```python
import torch

def _softmax(x, axis=-1):
    return torch.softmax(x, dim=axis)
def _gelu(x):
    return torch.nn.functional.gelu(x, approximate="tanh")
def _silu(x):
    return torch.nn.functional.silu(x)
def _sigmoid(x):
    return torch.sigmoid(x)
def _layernorm(x, axis=-1, eps=1e-5):
    m = x.mean(dim=axis, keepdim=True)
    v = x.var(dim=axis, keepdim=True, unbiased=False)
    return (x - m) / torch.sqrt(v + eps)
def _scatter_add(tgt, idx, src, axis=0):
    return tgt.clone().index_add_(axis, idx, src)
def _segment_sum(src, seg, n):
    out = torch.zeros((n,) + src.shape[1:], dtype=src.dtype)
    return out.index_add_(0, seg, src)
def _pad(x, pw):
    flat = tuple(v for pair in reversed(pw) for v in pair)
    return torch.nn.functional.pad(x, flat)

kernel_name = 'standalone__edge_featured_mpnn_egc__graph'

def setup_inputs():

    _w = (lambda a: (lambda t: t.to(torch.bfloat16) if t.is_floating_point() else t)(torch.as_tensor(a)))
    N, deg, D, De = 25000, 16, 128, max(16, 1)
    E = N * deg
    return {
        "x": _w((lambda *s: torch.randn(*s, dtype=torch.bfloat16) * 0.2)(N, D)),
        "e_attr": _w((lambda *s: torch.randn(*s, dtype=torch.bfloat16) * 0.2)(E, De)),
        "src": _w((lambda lo, hi, *s: torch.randint(lo, hi, s))(0, N, E).to(torch.int64)),
        "dst": _w((lambda lo, hi, *s: torch.randint(lo, hi, s))(0, N, E).to(torch.int64)),
        "u_w": _w((lambda *s: torch.randn(*s, dtype=torch.bfloat16) * 0.05)(D, D)),
        "v_w": _w((lambda *s: torch.randn(*s, dtype=torch.bfloat16) * 0.05)(D, D)),
        "g_w": _w((lambda *s: torch.randn(*s, dtype=torch.bfloat16) * 0.2)(2 * D + De, D)),
    }

def reference(x, e_attr, src, dst, u_w, v_w, g_w):
    N, D = x.shape
    g_in = torch.concatenate([x[dst], x[src], e_attr], axis=-1)
    eta = _sigmoid(g_in @ g_w)
    hv = x @ v_w
    msg = eta * hv[src]
    agg = _segment_sum(msg, dst, N)
    return _silu(x @ u_w + agg)
```

```python
import re


class Asm:
    def __init__(self):
        self.lines = []

    def __call__(self, text):
        for ln in text.split("\n"):
            ln = ln.strip()
            if ln:
                self.lines.append(ln)

    def label(self, name):
        self.lines.append(name + ":")

    def comment(self, text):
        self.lines.append("; " + text)

    def text(self):
        out = []
        for ln in self.lines:
            if ln.endswith(":") or ln.startswith(".") or ln.startswith(";"):
                out.append(ln)
            else:
                out.append("    " + ln)
        return "\n".join(out) + "\n"


_REG = re.compile(r"^(-|abs\()?([vsa])(\d+)\)?$")
_RNG = re.compile(r"^(-)?([vsa])\[(\d+):(\d+)\]$")
TRANS = ("v_exp_f32", "v_log_f32", "v_rcp_f32", "v_rsq_f32", "v_sqrt_f32", "v_sin_f32", "v_cos_f32",
         "v_exp_f16", "v_rcp_f16")


def regs_of(op):
    op = op.strip()
    m = _REG.match(op)
    if m:
        return {(m.group(2), int(m.group(3)))}
    m = _RNG.match(op)
    if m:
        return {(m.group(2), i) for i in range(int(m.group(3)), int(m.group(4)) + 1)}
    if op == "vcc":
        return {("s", "vcc")}
    if op in ("exec", "exec_lo", "exec_hi"):
        return {("s", "exec")}
    if op == "m0":
        return {("s", "m0")}
    return set()


def parse(ln):
    ln = ln.split(";")[0].strip()
    if not ln or ln.endswith(":") or ln.startswith("."):
        return None
    parts = ln.split(None, 1)
    op = parts[0]
    rest = parts[1] if len(parts) > 1 else ""
    ops = []
    depth = 0
    cur = ""
    for ch in rest:
        if ch == "[":
            depth += 1
        if ch == "]":
            depth -= 1
        if ch == "," and depth == 0:
            ops.append(cur.strip())
            cur = ""
        else:
            cur += ch
    if cur.strip():
        ops.append(cur.strip())
    mods = ""
    if ops:
        last = ops[-1].split(None, 1)
        if len(last) > 1:
            ops[-1] = last[0]
            mods = last[1]
    R = [regs_of(o) for o in ops]
    defs, uses = set(), set()
    kind = "other"
    base = op.replace("_e32", "").replace("_e64", "").replace("_dpp", "").replace("_sdwa", "")
    if op.startswith("v_mfma"):
        kind = "mfma"
        defs = R[0]
        uses = R[1] | R[2] | R[3]
        return dict(op=op, defs=defs, uses=uses, kind=kind, a=R[1], b=R[2], c=R[3], mods=mods,
                    passes=8 if "32x32x16" in op else 4, ln=ln)
    if op.startswith("v_"):
        kind = "valu"
        if base.startswith("v_cmp"):
            defs = R[0] | ({("s", "exec")} if base.startswith("v_cmpx") else set())
            uses = set().union(*R[1:])
        elif base in ("v_add_co_u32", "v_sub_co_u32", "v_addc_co_u32", "v_subb_co_u32"):
            defs = R[0] | R[1]
            uses = set().union(*R[2:])
        elif base.startswith("v_permlane"):
            defs = R[0] | R[1]
            uses = R[0] | R[1]
        else:
            defs = R[0]
            uses = set().union(*R[1:]) if len(R) > 1 else set()
            if base in ("v_fmac_f32", "v_fma_mixlo_f16", "v_fma_mixhi_f16", "v_writelane_b32") or "_dpp" in op:
                uses |= R[0]
    elif op.startswith("ds_"):
        kind = "ds"
        if op.startswith("ds_read") or "_rtn" in op or "permute" in op or "swizzle" in op:
            defs = R[0]
            uses = set().union(*R[1:])
        else:
            uses = set().union(*R)
    elif op.startswith("buffer_") or op.startswith("global_"):
        kind = "vmem"
        if "load" in op and "lds" not in mods.split() and not op.startswith("global_load_lds"):
            defs = R[0]
            uses = set().union(*R[1:])
        else:
            uses = set().union(*R)
            if "lds" in mods.split():
                uses |= {("s", "m0")}
    elif op.startswith("s_"):
        kind = "salu"
        if op in ("s_waitcnt", "s_nop", "s_barrier", "s_endpgm", "s_setprio", "s_sleep") or op.startswith("s_cbranch") or op == "s_branch":
            pass
        elif op.startswith("s_cmp") or op.startswith("s_bitcmp"):
            uses = set().union(*R)
        else:
            defs = R[0]
            uses = set().union(*R[1:]) if len(R) > 1 else set()
            if "saveexec" in op:
                defs = defs | {("s", "exec")}
    return dict(op=op, defs=defs, uses=uses, kind=kind, mods=mods, ln=ln, base=base, nops=ops)


def states(ins):
    if ins["op"] == "s_nop":
        return int(ins["nops"][0], 0) + 1
    return 1


def check_pair(p, c):
    need = 0
    vdefs = {r for r in p["defs"] if r[0] in "va"}
    sdefs = {r for r in p["defs"] if r[0] == "s"}
    if p["kind"] == "valu":
        if c["kind"] == "mfma" and vdefs & c["uses"]:
            need = max(need, 2)
        if c["kind"] == "mfma" and ("s", "exec") in sdefs:
            need = max(need, 4)
        if c["kind"] == "valu":
            if "_dpp" in c["op"] and vdefs & c["uses"]:
                need = max(need, 2)
            if "_dpp" in c["op"] and ("s", "exec") in sdefs:
                need = max(need, 5)
            if c["base"].startswith("v_permlane") and vdefs & c["uses"]:
                need = max(need, 2)
            if c["base"] in ("v_readlane_b32", "v_readfirstlane_b32") and vdefs & c["uses"]:
                need = max(need, 1)
            if c["base"] in ("v_readlane_b32", "v_readfirstlane_b32", "v_writelane_b32") and ("s", "exec") in sdefs:
                need = max(need, 4)
            if p["base"] in TRANS and c["base"] not in TRANS and vdefs & c["uses"]:
                need = max(need, 1)
            if (sdefs - {("s", "exec")}) & c["uses"]:
                need = max(need, 4 if c["base"] in ("v_readlane_b32", "v_writelane_b32") else 2)
            if p["base"] in ("v_fma_mixlo_f16", "v_fma_mixhi_f16") and vdefs & (c["uses"] | c["defs"]):
                need = max(need, 1)
        if c["kind"] == "vmem" and sdefs & c["uses"]:
            need = max(need, 5)
    if p["kind"] == "salu" and ("s", "m0") in sdefs and ("s", "m0") in c["uses"] and c["kind"] in ("vmem", "ds"):
        need = max(need, 1)
    if p["kind"] == "mfma":
        n = p["passes"]
        big = {4: 8, 8: 12}[n]
        if c["kind"] == "mfma":
            if p["defs"] & (c["a"] | c["b"]):
                need = max(need, big)
            if p["defs"] & c["c"]:
                if not (p["defs"] == c["c"] and c["passes"] == n):
                    need = max(need, {4: 6, 8: 10}[n])
        elif c["kind"] in ("valu", "vmem", "ds"):
            if p["defs"] & (c["uses"] | c["defs"]):
                need = max(need, big)
            if c["kind"] == "valu" and p["c"] & c["defs"]:
                need = max(need, {4: 3, 8: 7}[n])
    if p["kind"] == "vmem" and "store" in p["op"] and ("x3" in p["op"] or "x4" in p["op"]):
        data = regs_of(p["nops"][0]) if p["op"].startswith("buffer") else regs_of(p["nops"][1])
        if data & c["defs"]:
            need = max(need, 2)
    return need


def lint(lines, window=20):
    ins = []
    labels = {}
    for ln in lines:
        s = ln.split(";")[0].strip()
        if s.endswith(":"):
            labels[s[:-1]] = len(ins)
            continue
        p = parse(ln)
        if p:
            ins.append(p)
    probs = set()

    def succ(i):
        p = ins[i]
        if p["op"] == "s_endpgm":
            return []
        if p["op"] == "s_branch":
            return [labels[p["nops"][0]]]
        if p["op"].startswith("s_cbranch"):
            return [i + 1, labels[p["nops"][0]]]
        return [i + 1]

    for i, p in enumerate(ins):
        if p["kind"] not in ("valu", "mfma", "salu", "vmem"):
            continue
        stack = [(j, 0) for j in succ(i)]
        seen = {}
        while stack:
            j, d = stack.pop()
            if j >= len(ins) or d >= 13:
                continue
            if seen.get(j, 99) <= d:
                continue
            seen[j] = d
            c = ins[j]
            need = check_pair(p, c)
            if need > d:
                probs.add((i, j, need, d, p["ln"], c["ln"]))
            for k in succ(j):
                stack.append((k, d + states(c)))
    return sorted(probs)
```

```python
import sys
from asmlib import Asm, lint

NAME = "standalone__edge_featured_mpnn_egc__graph"
NEG_LOG2E = 0xBFB8AA3B
TAB, TAB_SZ = 0, 12800000
REC = 0x0D00000
OFF = 0x0F00000
WF = 0x0F40000
CF = 0x0F50000
STAMP = 0x0F60000
WS_USED = 0x1000000


def srd(a, d, lo, hi, size, add=None):
    if add is None:
        a(f"s_mov_b32 s{d}, s{lo}\ns_mov_b32 s{d+1}, s{hi}")
    else:
        a(f"s_add_u32 s{d}, s{lo}, {add}\ns_addc_u32 s{d+1}, s{hi}, 0")
    a(f"s_mov_b32 s{d+2}, {size}\ns_mov_b32 s{d+3}, 0x20000")


def stamp(a, opt, idx, kern):
    if opt.get("stamp"):
        a(f"s_memrealtime s[{70+2*idx}:{71+2*idx}]")


def stamp_flush(a, opt, n, kern, ws_lo, ws_hi, swave):
    if not opt.get("stamp"):
        return
    a("s_mov_b64 exec, -1")
    a("s_waitcnt lgkmcnt(0) vmcnt(0)")
    srd(a, 96, ws_lo, ws_hi, 0x100000, add=STAMP + kern * 0x40000)
    a(f"s_lshl_b32 s68, s2, 3\ns_add_u32 s68, s68, s{swave}\ns_lshl_b32 s68, s68, 6")
    a("v_mov_b32 v1, 0")
    for i in range(n):
        a(f"v_mov_b32 v0, s{70+2*i}")
        a(f"buffer_store_dword v0, v1, s[96:99], s68 offen offset:{4*i}")
    a("s_waitcnt vmcnt(0)")


def gen_k1(opt):
    a = Asm()
    HIST, BASE, STAGE, XL, WL = 0, 2048, 4096, 12288, 45056
    a.label("k1_kernel")
    a("s_cmp_ge_u32 s2, 256\ns_cbranch_scc1 K1_END")
    stamp(a, opt, 0, 0)
    a("""s_load_dwordx4 s[4:7], s[0:1], 0
    s_load_dwordx4 s[8:11], s[0:1], 16
    s_load_dwordx4 s[12:15], s[0:1], 32
    s_load_dwordx2 s[16:17], s[0:1], 48
    s_load_dwordx2 s[18:19], s[0:1], 72
    v_lshrrev_b32 v1, 6, v0
    v_and_b32 v2, 63, v0
    v_readfirstlane_b32 s20, v1
    s_cmp_ge_u32 s2, 250
    s_cbranch_scc1 K1_PREP""")
    a("""v_and_b32 v3, 255, v0
    v_lshrrev_b32 v7, 8, v0
    v_mul_u32_u24 v4, 3200, v7
    v_lshl_add_u32 v4, v3, 4, v4
    v_lshlrev_b32 v5, 10, v7
    v_mov_b32 v6, 4
    v_lshlrev_b32 v8, 2, v0
    v_mov_b32 v9, 0
    ds_write_b32 v8, v9
    s_movk_i32 s21, 200
    v_cmp_gt_u32 s[56:57], s21, v3
    s_mul_i32 s22, s2, 6400
    s_mul_i32 s23, s2, 25600
    s_waitcnt lgkmcnt(0)""")
    srd(a, 24, 10, 11, 6400, add="s22")
    srd(a, 28, 8, 9, 6400, add="s22")
    a("s_mov_b64 exec, s[56:57]")
    a("buffer_load_dwordx4 v[10:13], v4, s[24:27], 0 offen")
    a("buffer_load_dwordx4 v[14:17], v4, s[28:31], 0 offen")
    a("s_mov_b64 exec, -1")
    srd(a, 32, 4, 5, 25600, add="s23")
    srd(a, 36, 16, 17, 32768, add=32768)
    srd(a, 40, 14, 15, 32768)
    a(f"""v_lshrrev_b32 v18, 4, v2
    s_lshl_b32 s58, s20, 2
    v_add_u32 v19, s58, v18
    v_xor_b32 v20, v19, v2
    v_and_b32 v20, 15, v20
    v_lshlrev_b32 v20, 4, v20
    v_lshl_add_u32 v20, v19, 8, v20
    s_lshl_b32 s59, s20, 10
    s_add_u32 s60, s59, {XL}""")
    for st in range(4):
        a(f"s_add_u32 m0, s60, {st*8192}")
        if st:
            a("v_add_u32 v20, 8192, v20")
        else:
            a("s_nop 0")
        a("buffer_load_dwordx4 v20, s[32:35], 0 offen lds")
    a(f"""v_lshlrev_b32 v21, 2, v18
    v_xor_b32 v21, v21, v2
    v_and_b32 v21, 15, v21
    v_lshlrev_b32 v21, 4, v21
    v_lshl_add_u32 v21, v18, 8, v21
    s_lshl_b32 s59, s20, 12
    s_add_u32 s60, s59, {WL}""")
    for mat, s in ((0, 36), (1, 40)):
        a(f"s_add_u32 m0, s60, {mat*32768}\ns_nop 0")
        for k in range(4):
            a(f"buffer_load_dwordx4 v21, s[{s}:{s+3}], s59 offen offset:{k*1024} lds")
    a("s_add_u32 s22, s22, %d" % REC)
    srd(a, 44, 18, 19, 6400, add="s22")
    a("s_lshl_b32 s22, s2, 10\ns_add_u32 s22, s22, %d" % OFF)
    srd(a, 48, 18, 19, 1024, add="s22")
    a("s_mul_i32 s22, s2, 51200")
    srd(a, 52, 18, 19, 51200, add="s22")
    a("s_barrier")
    a("s_waitcnt vmcnt(12)")
    stamp(a, opt, 1, 0)
    a("s_mov_b64 exec, s[56:57]")
    a("v_lshlrev_b32 v22, 2, v3")
    for k in range(4):
        d, s_, b, dl, g, t, rk = 10 + k, 14 + k, 24 + k, 28, 29, 30, 32 + k
        a(f"""v_mul_u32_u24 v{b}, 5243, v{d}
        v_lshrrev_b32 v{b}, 19, v{b}
        v_mul_u32_u24 v{dl}, 100, v{b}
        v_lshl_add_u32 v{b}, v{b}, 2, v5
        ds_add_rtn_u32 v{rk}, v{b}, v6 offset:{HIST}
        v_sub_u32 v{dl}, v{d}, v{dl}
        v_mul_u32_u24 v{g}, 2622, v{dl}
        v_lshrrev_b32 v{g}, 15, v{g}
        v_mad_u32_u24 v{t}, v{g}, 25, 1
        v_lshrrev_b32 v{t}, 1, v{t}
        v_sub_u32 v{dl}, v{dl}, v{t}
        v_lshlrev_b32 v{g}, 29, v{g}
        v_lshl_or_b32 v{g}, v{s_}, 14, v{g}
        v_lshl_or_b32 v{g}, v{dl}, 10, v{g}
        v_add3_u32 v{s_}, v{g}, v22, {k}""")
    a("s_mov_b64 exec, -1")
    a("s_waitcnt lgkmcnt(0)\ns_barrier")
    a(f"""v_lshl_add_u32 v36, v2, 4, v5
    ds_read_b128 v[40:43], v36 offset:{HIST}
    s_waitcnt lgkmcnt(0)
    v_add_u32 v41, v41, v40
    v_add_u32 v42, v42, v41
    v_add_u32 v43, v43, v42
    v_mov_b32 v44, v43
    s_nop 1""")
    for m in ("row_shr:1 row_mask:0xf", "row_shr:2 row_mask:0xf", "row_shr:4 row_mask:0xf", "row_shr:8 row_mask:0xf",
              "row_bcast:15 row_mask:0xa", "row_bcast:31 row_mask:0xc"):
        a(f"v_add_u32_dpp v44, v44, v44 {m} bank_mask:0xf\ns_nop 1")
    a(f"""v_sub_u32 v44, v44, v43
    v_add_u32 v45, v44, v40
    v_add_u32 v46, v44, v41
    v_add_u32 v47, v44, v42
    ds_write_b128 v36, v[44:47] offset:{BASE}
    s_and_b32 s61, s20, 3
    s_cmp_lg_u32 s61, 0
    s_cbranch_scc1 K1_NOOFF
    v_lshl_or_b32 v48, v45, 16, v44
    v_lshl_or_b32 v49, v47, 16, v46
    v_lshrrev_b32 v50, 1, v36
    buffer_store_dwordx2 v[48:49], v50, s[48:51], 0 offen""")
    a.label("K1_NOOFF")
    a("s_waitcnt lgkmcnt(0)\ns_mov_b64 exec, s[56:57]")
    for k in range(4):
        a(f"ds_read_b32 v{24+k}, v{24+k} offset:{BASE}")
    a("v_mul_u32_u24 v23, 3200, v7\ns_waitcnt lgkmcnt(0)")
    for k in range(4):
        a(f"v_add3_u32 v{24+k}, v{24+k}, v{32+k}, v23\nds_write_b32 v{24+k}, v{14+k} offset:{STAGE}")
    a("s_mov_b64 exec, -1")
    a("s_waitcnt vmcnt(0) lgkmcnt(0)\ns_barrier")
    stamp(a, opt, 2, 0)
    a(f"""s_mov_b64 exec, s[56:57]
    ds_read_b128 v[10:13], v4 offset:{STAGE}
    s_mov_b64 exec, -1""")
    a(f"""s_and_b32 s62, s20, 3
    s_lshr_b32 s63, s20, 2
    v_bfe_u32 v18, v2, 2, 2
    v_bfe_u32 v19, v2, 4, 1
    v_bfe_u32 v20, v2, 1, 1
    v_lshl_add_u32 v19, v19, 1, v20
    s_lshl_b32 s64, s62, 2
    v_add_u32 v19, s64, v19
    v_lshlrev_b32 v20, 2, v18
    v_xor_b32 v19, v19, v20
    v_lshrrev_b32 v21, 5, v2
    v_lshl_add_u32 v20, v21, 3, v18
    v_lshlrev_b32 v20, 8, v20
    v_lshl_add_u32 v20, v19, 4, v20
    v_and_b32 v19, 1, v2
    v_lshl_add_u32 v20, v19, 3, v20
    v_add_u32 v20, {WL}, v20
    s_waitcnt lgkmcnt(0)
    s_mov_b64 exec, s[56:57]
    buffer_store_dwordx4 v[10:13], v4, s[44:47], 0 offen
    s_mov_b64 exec, -1""")
    a(f"""v_and_b32 v18, 31, v2
    v_xor_b32 v22, v21, v18
    v_and_b32 v22, 15, v22
    v_lshlrev_b32 v22, 4, v22
    v_lshl_add_u32 v22, v18, 8, v22
    s_lshl_b32 s64, s63, 13
    s_add_u32 s64, s64, {XL}
    v_add_u32 v22, s64, v22
    v_lshlrev_b32 v23, 11, v21
    v_lshl_add_u32 v23, v18, 2, v23
    s_lshl_b32 s64, s63, 14
    s_lshl_b32 s65, s62, 7
    s_add_u32 s64, s64, s65
    v_add_u32 v23, s64, v23""")
    for s in range(8):
        a(f"v_xor_b32 v{24+s}, {s*32}, v22")
    for s in range(8):
        a(f"ds_read_b128 v[{32+4*s}:{35+4*s}], v{24+s}")
    cnt = 8
    for s in range(8):
        for mat in range(2):
            for jj in range(2):
                r = 64 + mat * 32 + s * 4 + jj * 2
                a(f"ds_read_b64_tr_b16 v[{r}:{r+1}], v20 offset:{mat*32768+s*4096+jj*1024}")
                cnt += 1
        if s >= 1:
            a("s_waitcnt lgkmcnt(4)")
            p = s - 1
            a(f"v_mfma_f32_32x32x16_bf16 v[128:143], v[{32+4*p}:{35+4*p}], v[{64+4*p}:{67+4*p}], {'0' if p==0 else 'v[128:143]'}")
            a(f"v_mfma_f32_32x32x16_bf16 v[144:159], v[{32+4*p}:{35+4*p}], v[{96+4*p}:{99+4*p}], {'0' if p==0 else 'v[144:159]'}")
    a("s_waitcnt lgkmcnt(0)")
    a("v_mfma_f32_32x32x16_bf16 v[128:143], v[60:63], v[92:95], v[128:143]")
    a("v_mfma_f32_32x32x16_bf16 v[144:159], v[60:63], v[124:127], v[144:159]")
    for s in range(8):
        a(f"ds_read_b128 v[{192+4*s}:{195+4*s}], v{24+s} offset:16384")
    a(f"s_mov_b32 s64, {NEG_LOG2E}\ns_mov_b32 s65, 0x7fff0000\ns_mov_b32 s66, 0xffff")
    for s in range(8):
        a(f"s_waitcnt lgkmcnt({7-s})")
        a(f"v_mfma_f32_32x32x16_bf16 v[160:175], v[{192+4*s}:{195+4*s}], v[{64+4*s}:{67+4*s}], {'0' if s==0 else 'v[160:175]'}")
        a(f"v_mfma_f32_32x32x16_bf16 v[176:191], v[{192+4*s}:{195+4*s}], v[{96+4*s}:{99+4*s}], {'0' if s==0 else 'v[176:191]'}")

    def pack(xb, hv, g, tidx):
        for r in range(4):
            x, h, t = xb + 4 * g + r, hv + 4 * g + r, 32 + r
            a(f"""v_mul_f32 v{x}, s64, v{x}
            v_and_b32 v{t}, 0x7fffffff, v{h}
            v_cvt_f16_f32 v{x}, v{x}
            v_add_u32 v{t}, 0x8000, v{t}
            v_and_b32 v{x}, 0xffff, v{x}
            v_sub_u32_e64 v{t}, v{t}, v{x} clamp
            v_bfi_b32 v{t}, s65, v{t}, v{h}
            v_bfi_b32 v{x}, s66, v{x}, v{t}""")
        a(f"s_mov_b32 s67, {g*4096+tidx*32768}")
        for r in range(4):
            a(f"buffer_store_dword v{xb+4*g+r}, v23, s[52:55], s67 offen offset:{r*512}")

    stamp(a, opt, 3, 0)
    for g in range(4):
        pack(128, 144, g, 0)
    a("s_cmp_eq_u32 s63, 1\ns_cbranch_scc0 K1_FULL2")
    a("s_mov_b32 exec_hi, 0")
    pack(160, 176, 0, 1)
    a("s_branch K1_FIN")
    a.label("K1_FULL2")
    for g in range(4):
        pack(160, 176, g, 1)
    a.label("K1_FIN")
    stamp(a, opt, 4, 0)
    if opt.get("stamp"):
        a("s_waitcnt vmcnt(0)")
        stamp(a, opt, 5, 0)
        stamp_flush(a, opt, 6, 0, 18, 19, 20)
    a("s_endpgm")

    a.label("K1_PREP")
    a("""s_sub_u32 s21, s2, 250
    s_lshl_b32 s21, s21, 3
    s_add_u32 s21, s21, s20
    v_lshrrev_b32 v3, 4, v2
    v_and_b32 v4, 15, v2
    v_lshlrev_b32 v5, 11, v3
    v_lshl_add_u32 v5, v4, 3, v5
    v_lshlrev_b32 v6, 4, v2
    v_and_b32 v7, 1, v3
    v_lshlrev_b32 v7, 11, v7
    v_lshrrev_b32 v8, 1, v3
    v_lshl_add_u32 v7, v8, 10, v7
    v_lshl_add_u32 v7, v4, 3, v7
    v_lshlrev_b32 v8, 3, v2
    s_waitcnt lgkmcnt(0)""")
    srd(a, 24, 16, 17, 272 * 256)
    srd(a, 28, 12, 13, 32768)
    srd(a, 32, 18, 19, 0x20000, add=WF)
    a.label("K1_PTASK")
    a("""s_cmp_ge_u32 s21, 64
    s_cbranch_scc1 K1_PC
    s_bfe_u32 s40, s21, 0x30002
    s_and_b32 s41, s21, 3
    s_lshl_b32 s41, s41, 13
    s_lshr_b32 s42, s40, 2
    s_lshl_b32 s42, s42, 7
    s_and_b32 s43, s40, 3
    s_lshl_b32 s43, s43, 1
    s_add_u32 s41, s41, s42
    s_add_u32 s41, s41, s43
    s_lshl_b32 s44, s21, 10
    s_cmp_ge_u32 s21, 32
    s_cbranch_scc1 K1_PU""")
    for j in range(8):
        a(f"buffer_load_ushort v{16+j}, v5, s[24:27], s41 offen offset:{j*256}")
    a("s_branch K1_PW")
    a.label("K1_PU")
    for j in range(8):
        a(f"buffer_load_ushort v{16+j}, v5, s[28:31], s41 offen offset:{j*256}")
    a.label("K1_PW")
    a("s_waitcnt vmcnt(0)")
    for j in range(4):
        a(f"v_lshl_or_b32 v{24+j}, v{17+2*j}, 16, v{16+2*j}")
    a("buffer_store_dwordx4 v[24:27], v6, s[32:35], s44 offen")
    a("s_add_u32 s21, s21, 48\ns_cmp_lt_u32 s21, 72\ns_cbranch_scc1 K1_PTASK\ns_endpgm")
    a.label("K1_PC")
    a(f"""s_sub_u32 s40, s21, 64
    s_lshr_b32 s42, s40, 2
    s_lshl_b32 s42, s42, 7
    s_and_b32 s43, s40, 3
    s_lshl_b32 s43, s43, 1
    s_add_u32 s41, s42, s43
    s_add_u32 s41, s41, 65536
    s_lshl_b32 s44, s40, 9
    s_add_u32 s44, s44, {CF-WF}
    s_mov_b32 s45, {NEG_LOG2E}""")
    for j in range(4):
        a(f"buffer_load_ushort v{16+j}, v7, s[24:27], s41 offen offset:{j*256}")
    a("s_waitcnt vmcnt(0)")
    for j in range(4):
        a(f"v_lshlrev_b32 v{16+j}, 16, v{16+j}")
    for j in range(4):
        a(f"v_mul_f32 v{16+j}, s45, v{16+j}")
    a("v_cvt_pk_bf16_f32 v24, v16, v17\nv_cvt_pk_bf16_f32 v25, v18, v19")
    a("buffer_store_dwordx2 v[24:25], v8, s[32:35], s44 offen")
    a.label("K1_END")
    a("s_endpgm")
    return a, 110592


HIST, BASE, FLAG, TG, TS = 0, 256, 512, 1024, 1536
GSTR = 352 * 4
LSRC = 2048
LEA = LSRC + 8 * GSTR
LD = LEA + 8 * GSTR
XR = LD + 8 * GSTR
WFL = XR + 104 * 256
K2_LDS = WFL + 65536
CAP4 = 320 * 4
ACC, BOP, P, Z, GA, SA = 128, 160, 192, 208, 224, 240
VLANE, VGC, VSC, PSRC, PG, PD, VTID, VCUR, VEND, VT0, VT1, VT2 = range(244, 256)
SHIFT_BIN = 24


def G(slot, s, r, hh, t=0):
    return slot * 64 + s * 32 + r * 8 + hh * 4 + t


def q4(r):
    return f"v[{r}:{r+3}]"


def idx_reads(a, slot, toff):
    a(f"ds_read_b128 {q4(G(slot,1,0,0))}, v{PSRC} offset:{toff*128}")
    a(f"ds_read_b128 {q4(G(slot,1,1,0))}, v{PSRC} offset:{toff*128+64}")
    r = G(slot, 1, 2, 0)
    a(f"ds_read2_b32 v[{r}:{r+1}], v{PG} offset0:{toff*32} offset1:{toff*32+16}")


def issue_list(slot):
    L = []
    r = G(slot, 1, 2, 0)
    ga = GA + slot * 8
    L.append(f"v_add_u32 v{ga}, v{r}, v{VGC}")
    L.append(f"v_add_u32 v{ga+4}, v{r+1}, v{VGC}")
    for s in range(2):
        for rr in range(4):
            L.append(f"v_add_u32 v{G(slot,s,rr,1)}, v{G(slot,1,s,0)+rr}, v{VLANE}")
    L.append("s_mov_b32 exec_hi, 0")
    L.append(f"buffer_load_dwordx4 {q4(ga)}, v{ga}, s[16:19], 0 offen")
    L.append(f"buffer_load_dwordx4 {q4(ga+4)}, v{ga+4}, s[16:19], 0 offen")
    L.append("s_mov_b64 exec, s[50:51]")
    L.append(f"ds_read_b128 {q4(ga)}, v{ga}")
    L.append(f"ds_read_b128 {q4(ga+4)}, v{ga+4}")
    L.append("s_mov_b64 exec, -1")
    for s in range(2):
        for hh in range(2):
            for rr in range(4):
                off = " offset:256" if hh else ""
                L.append(f"buffer_load_dwordx4 {q4(G(slot,s,rr,hh))}, v{G(slot,s,rr,1)}, s[12:15], 0 offen{off}")
    return L


def mf16(d, aa, b, c):
    return f"v_mfma_f32_16x16x32_bf16 {q4(d)}, {q4(aa)}, {q4(b)}, {c}"


def weave(a, main, extra, start=0, step=1):
    e = list(extra)
    for i, m in enumerate(main):
        a(m)
        if e and i >= start and (i - start) % step == 0:
            a(e.pop(0))
    for x in e:
        a(x)


def tile(a, opt, slot, toff):
    pk = opt.get("pk", 1)
    ga = GA + slot * 8
    gan = GA + (1 - slot) * 8
    a(f"ds_read2_b32 v[{SA}:{SA+1}], v{PD} offset0:{toff*32} offset1:{toff*32+16}")
    seg_pending = []
    for ph in range(4):
        s, hh = ph >> 1, ph & 1
        a(f"s_waitcnt vmcnt({30-4*ph})")
        mixes = [f"v_fma_mix_f32 v{Z+4*r+t}, v{G(slot,s,r,hh,t)}, 1.0, v{P+4*t+r} op_sel_hi:[1,0,0]"
                 for t in range(4) for r in range(4)]
        weave(a, mixes, seg_pending, start=1, step=2)
        seg_pending = []
        if ph == 0:
            a("s_waitcnt lgkmcnt(0)")
            a(f"v_add_u32 v{SA+2}, v{SA+1}, v{VSC}\nv_add_u32 v{SA}, v{SA}, v{VSC}")
            a(f"ds_read_b64_tr_b16 v[{SA+2}:{SA+3}], v{SA+2}\nds_read_b64_tr_b16 v[{SA}:{SA+1}], v{SA}")
        if ph == 3:
            a("s_waitcnt vmcnt(16)")
            gate = [mf16(P + 4 * t, gan, BOP + 4 * t, "0") for t in range(4)]
        else:
            ns, nh = (ph + 1) >> 1, (ph + 1) & 1
            gate = [mf16(P + 4 * t, ga + 4 * ns, BOP + 16 * nh + 4 * t, "0") for t in range(4)]
        exps = [f"v_exp_f32 v{Z+i}, v{Z+i}" for i in range(16)]
        weave(a, exps, gate, start=0, step=1)
        if pk:
            for i in range(0, 16, 2):
                a(f"v_pk_add_f32 v[{Z+i}:{Z+i+1}], v[{Z+i}:{Z+i+1}], 1.0 op_sel_hi:[1,0]")
        else:
            for i in range(16):
                a(f"v_add_f32 v{Z+i}, 1.0, v{Z+i}")
        for i in range(16):
            a(f"v_rcp_f32 v{Z+i}, v{Z+i}")
        for r in range(4):
            if pk:
                for t in (0, 2):
                    z, g = Z + 4 * r + t, G(slot, s, r, hh, t)
                    a(f"v_pk_mul_f32 v[{z}:{z+1}], v[{z}:{z+1}], v[{g}:{g+1}]")
            else:
                for t in range(4):
                    a(f"v_mul_f32 v{Z+4*r+t}, v{Z+4*r+t}, v{G(slot,s,r,hh,t)}")
        if ph == 2:
            idx_reads(a, slot, toff + 2)
        for t in range(4):
            m = G(slot, 0, t, hh) + 2 * s
            a(f"v_cvt_pk_bf16_f32 v{m}, v{Z+t}, v{Z+4+t}\nv_cvt_pk_bf16_f32 v{m+1}, v{Z+8+t}, v{Z+12+t}")
        if ph >= 2:
            seg = [mf16(ACC + 16 * hh + 4 * t, SA, G(slot, 0, t, hh), q4(ACC + 16 * hh + 4 * t)) for t in range(4)]
            if ph == 2:
                a("s_waitcnt lgkmcnt(3)")
                seg_pending = seg
            else:
                a("s_add_u32 s46, s46, 1\ns_add_u32 s47, s46, 1\ns_cmp_lt_u32 s47, s45")
                a(f"s_cselect_b32 s14, {TAB_SZ}, 0\ns_cselect_b32 s18, {TAB_SZ}, 0")
                a("s_waitcnt lgkmcnt(0)")
                for m in seg:
                    a(m)
                for x in issue_list(slot):
                    a(x)


def gen_k2(opt):
    a = Asm()
    a.label("k2_kernel")
    a("""s_and_b32 s3, s2, 7
    s_lshl_b32 s3, s3, 5
    s_lshr_b32 s32, s2, 3
    s_add_u32 s32, s32, s3
    s_cmp_ge_u32 s2, 256
    s_cbranch_scc1 K2_END
    s_cmp_ge_u32 s32, 250
    s_cbranch_scc1 K2_END""")
    stamp(a, opt, 0, 1)
    a(f"""s_load_dwordx4 s[4:7], s[0:1], 0
    s_load_dwordx2 s[8:9], s[0:1], 56
    s_load_dwordx2 s[10:11], s[0:1], 72
    v_mov_b32 v{VTID}, v0
    v_lshrrev_b32 v1, 6, v0
    v_and_b32 v2, 63, v0
    v_readfirstlane_b32 s33, v1
    v_and_b32 v3, 15, v2
    v_lshrrev_b32 v4, 4, v2
    v_lshlrev_b32 v{VLANE}, 4, v3
    s_mov_b32 s50, 0
    s_mov_b32 s51, -1
    v_lshlrev_b32 v{VGC}, 4, v4
    s_mov_b64 exec, s[50:51]
    v_add_u32 v{VGC}, {TG-32}, v{VGC}
    s_mov_b64 exec, -1
    v_and_b32 v5, 3, v2
    v_lshlrev_b32 v5, 3, v5
    v_add_u32 v{VSC}, {TS}, v5
    v_lshlrev_b32 v6, 9, v0
    s_lshl_b32 s34, s32, 1
    s_add_u32 s34, s34, {OFF}
    v_mov_b32 v{VCUR}, 0
    v_mov_b32 v{VEND}, 0
    s_movk_i32 s35, 500
    v_cmp_gt_u32 vcc, s35, v0
    s_mul_i32 s36, s32, 25600
    s_waitcnt lgkmcnt(0)""")
    srd(a, 20, 10, 11, WS_USED)
    a(f"""s_mov_b64 exec, vcc
    buffer_load_ushort v{VCUR}, v6, s[20:23], s34 offen
    buffer_load_ushort v{VEND}, v6, s[20:23], s34 offen offset:2
    s_mov_b64 exec, -1""")
    a(f"""v_lshlrev_b32 v7, 4, v2
    s_lshl_b32 s37, s33, 13
    s_add_u32 s38, s37, {WF}
    s_add_u32 m0, s37, {WFL}
    s_add_u32 s39, s38, 4096""")
    for k in range(4):
        a(f"buffer_load_dwordx4 v7, s[20:23], s38 offen offset:{k*1024} lds")
    a(f"s_add_u32 m0, s37, {WFL+4096}\ns_nop 0")
    for k in range(4):
        a(f"buffer_load_dwordx4 v7, s[20:23], s39 offen offset:{k*1024} lds")
    srd(a, 24, 4, 5, 26624, add="s36")
    a("s_sub_u32 s37, 6400000, s36\ns_min_u32 s26, s26, s37")
    a(f"""s_lshl_b32 s37, s33, 2
    v_add_u32 v8, s37, v4
    v_xor_b32 v9, v8, v2
    v_and_b32 v9, 15, v9
    v_lshlrev_b32 v9, 4, v9
    v_lshl_add_u32 v9, v8, 8, v9
    s_lshl_b32 s37, s33, 10
    s_add_u32 s37, s37, {XR}""")
    for st in range(3):
        a(f"s_add_u32 m0, s37, {st*8192}")
        a("v_add_u32 v9, 8192, v9" if st else "s_nop 0")
        a("buffer_load_dwordx4 v9, s[24:27], 0 offen lds")
    a(f"""s_cmp_ge_u32 s33, 2
    s_cbranch_scc1 K2_NOX4
    s_add_u32 m0, s37, {3*8192}
    v_add_u32 v9, 8192, v9
    buffer_load_dwordx4 v9, s[24:27], 0 offen lds""")
    a.label("K2_NOX4")
    a(f"v_lshlrev_b32 v7, 3, v2\ns_mov_b32 s37, {CF}")
    for b in range(8):
        a(f"buffer_load_dwordx2 v[{BOP+4*b}:{BOP+4*b+1}], v7, s[20:23], s37 offen offset:{b*512}")
    srd(a, 12, 10, 11, TAB_SZ)
    srd(a, 16, 6, 7, TAB_SZ)
    srd(a, 28, 8, 9, 25600, add="s36")
    a(f"""v_bfe_u32 v10, v0, 3, 4
    v_and_b32 v11, 7, v0
    v_bfe_u32 v12, v10, 2, 1
    v_bfe_u32 v13, v10, 3, 1
    v_and_b32 v14, 3, v10
    v_lshl_or_b32 v14, v12, 3, v14
    v_lshl_or_b32 v14, v13, 2, v14
    s_movk_i32 s37, 128
    v_cmp_gt_u32 vcc, s37, v0
    v_lshlrev_b32 v15, 2, v0
    v_mov_b32 v17, 0x3f80
    v_cndmask_b32 v14, v10, v14, vcc
    v_and_b32 v16, 1, v14
    v_lshlrev_b32 v16, 4, v16
    v_lshlrev_b32 v17, v16, v17
    v_lshrrev_b32 v14, 1, v14
    v_cmp_eq_u32 vcc, v14, v11
    s_cmp_ge_u32 s33, 4
    s_nop 0
    v_cndmask_b32 v17, 0, v17, vcc
    s_cbranch_scc1 K2_NOTAB
    ds_write_b32 v15, v17 offset:{TG}""")
    a.label("K2_NOTAB")
    a("s_mov_b32 s40, 0\ns_movk_i32 s41, 512\ns_mov_b32 s42, 1")
    a(f"""v_mul_u32_u24 v10, 3200, v0
    s_waitcnt vmcnt(19)
    v_add_u32 v{VCUR}, v{VCUR}, v10
    v_add_u32 v{VEND}, v{VEND}, v10""")
    stamp(a, opt, 1, 1)

    R, RK, BN = 64, 80, 96
    VREM, VFOUR, VCB = 112, 113, 114
    a.label("K2_ROUND")
    a(f"""v_and_b32 v2, 63, v{VTID}
    v_lshlrev_b32 v3, 2, v2
    v_mov_b32 v4, 0
    s_cmp_lg_u32 s33, 0
    s_cbranch_scc1 K2_NOZ
    ds_write_b32 v3, v4 offset:{HIST}
    ds_write_b32 v4, v4 offset:{FLAG}""")
    a.label("K2_NOZ")
    a(f"""v_subrev_u32 v5, s40, v{VTID}
    v_cmp_gt_u32 vcc, s41, v5
    v_sub_u32 v{VREM}, v{VEND}, v{VCUR}
    s_mov_b32 s37, {REC}
    v_cndmask_b32 v{VREM}, 0, v{VREM}, vcc
    v_mov_b32 v{VFOUR}, 4""")
    for m in range(4):
        a(f"""v_cmp_lt_u32 vcc, {16*m}, v{VREM}
        s_and_b64 exec, exec, vcc
        s_cbranch_scc0 K2_LDONE
        buffer_load_dwordx4 {q4(R+4*m)}, v{VCUR}, s[20:23], s37 offen offset:{16*m}""")
    a.label("K2_LDONE")
    a(f"""s_mov_b64 exec, -1
    v_mul_u32_u24 v{VCB}, 25600, v{VTID}
    s_waitcnt lgkmcnt(0)
    s_barrier
    s_waitcnt vmcnt(0)""")
    stamp(a, opt, 2, 1)
    for j in range(16):
        a(f"""v_cmp_lt_u32 vcc, {4*j}, v{VREM}
        s_and_b64 exec, exec, vcc
        s_cbranch_scc0 K2_CDONE
        v_lshrrev_b32 v{BN+j}, {SHIFT_BIN}, v{R+j}
        v_and_b32 v{BN+j}, 0xfc, v{BN+j}
        ds_add_rtn_u32 v{RK+j}, v{BN+j}, v{VFOUR} offset:{HIST}""")
    a(f"""v_cmp_lt_u32 vcc, 64, v{VREM}
    s_and_b64 exec, exec, vcc
    s_cbranch_scc0 K2_CDONE
    ds_write_b32 v4, v{VFOUR} offset:{FLAG}""")
    a.label("K2_CDONE")
    a(f"""s_mov_b64 exec, -1
    v_and_b32 v5, 7, v2
    v_lshlrev_b32 v6, 5, v5
    s_waitcnt lgkmcnt(0)
    s_barrier
    ds_read_b128 v[8:11], v6 offset:{HIST}
    ds_read_b128 v[12:15], v6 offset:{HIST+16}
    ds_read_b32 v7, v4 offset:{FLAG}
    v_mul_u32_u24 v16, {GSTR}, v5
    s_waitcnt lgkmcnt(0)
    v_readfirstlane_b32 s48, v7""")
    for k in range(7):
        a(f"v_add_u32 v{17+k}, v{16+k}, v{8+k}")
    a(f"""v_add_u32 v24, v23, v15
    ds_write_b128 v6, v[16:19] offset:{BASE}
    ds_write_b128 v6, v[20:23] offset:{BASE+16}
    v_sub_u32 v24, v24, v16
    s_movk_i32 s37, {CAP4}
    v_cmp_lt_u32 vcc, s37, v24
    s_cbranch_vccz K2_FITS
    s_movk_i32 s41, 16
    s_waitcnt lgkmcnt(0)
    s_barrier
    s_branch K2_ROUND""")
    a.label("K2_FITS")
    a("s_cmp_eq_u32 s42, 0\ns_cbranch_scc1 K2_HAVEG")
    a("v_lshl_add_u32 v25, v24, 3, v5\nv_mov_b32 v26, 0\ns_sub_u32 s37, 11, s33")
    for k in range(1, 8):
        a(f"""v_mov_b32_dpp v27, v25 row_ror:{k} row_mask:0xf bank_mask:0xf
        v_cmp_gt_u32 vcc, v27, v25
        s_nop 1
        v_addc_co_u32 v26, vcc, 0, v26, vcc""")
    a("""s_cmp_lt_u32 s33, 4
    s_cselect_b32 s37, s33, s37
    v_cmp_eq_u32 vcc, s37, v26
    s_nop 0
    s_ff1_i32_b64 s43, vcc""")
    if opt.get("nopair"):
        a("s_mov_b32 s43, s33")
    a.label("K2_HAVEG")
    a("s_nop 3\nv_readlane_b32 s44, v24, s43\ns_waitcnt lgkmcnt(0)")
    for j in range(16):
        a(f"""v_cmp_lt_u32 vcc, {4*j}, v{VREM}
        s_and_b64 exec, exec, vcc
        s_cbranch_scc0 K2_BDONE
        ds_read_b32 v{BN+j}, v{BN+j} offset:{BASE}""")
    a.label("K2_BDONE")
    a("s_mov_b64 exec, -1\ns_mov_b32 s37, 0xfffe00\ns_movk_i32 s38, 0x1e0\ns_waitcnt lgkmcnt(0)")
    for j in range(16):
        a(f"""v_cmp_lt_u32 vcc, {4*j}, v{VREM}
        s_and_b64 exec, exec, vcc
        s_cbranch_scc0 K2_SDONE
        v_add_u32 v{BN+j}, v{BN+j}, v{RK+j}
        v_lshrrev_b32 v8, 5, v{R+j}
        v_and_b32 v9, 0x3ff, v{R+j}
        v_and_b32 v10, s37, v8
        v_lshl_add_u32 v9, v9, 5, v{VCB}
        v_and_b32 v8, s38, v8
        ds_write_b32 v{BN+j}, v10 offset:{LSRC}
        ds_write_b32 v{BN+j}, v9 offset:{LEA}
        ds_write_b32 v{BN+j}, v8 offset:{LD}""")
    a.label("K2_SDONE")
    a(f"""s_mov_b64 exec, -1
    v_min_u32 v8, 64, v{VREM}
    v_add_u32 v{VCUR}, v{VCUR}, v8
    s_mul_i32 s49, s43, {GSTR}
    s_add_u32 s45, s44, 127
    s_lshr_b32 s45, s45, 7
    s_add_u32 s37, s49, s44
    v_lshl_add_u32 v8, v2, 2, s37
    v_mov_b32 v9, 0x1e0
    v_lshrrev_b32 v10, 4, v2
    v_and_b32 v11, 15, v2
    s_add_u32 s37, s49, {LSRC}
    v_lshl_add_u32 v{PSRC}, v10, 4, s37
    s_add_u32 s37, s49, {LEA}
    v_lshl_add_u32 v{PG}, v11, 2, s37
    s_mov_b64 exec, s[50:51]
    v_add_u32 v{PG}, {LD-LEA}, v{PG}
    s_mov_b64 exec, -1
    v_and_b32 v{PD}, 0xfc, v2
    s_add_u32 s37, s49, {LD}
    v_add_u32 v{PD}, s37, v{PD}
    s_waitcnt lgkmcnt(0)
    s_barrier""")
    stamp(a, opt, 3, 1)
    a(f"""s_mov_b32 exec_hi, 0
    ds_write_b32 v8, v4 offset:{LSRC}
    ds_write_b32 v8, v4 offset:{LEA}
    ds_write_b32 v8, v9 offset:{LD}
    s_mov_b32 exec_hi, -1
    s_cmp_lt_u32 0, s45
    s_cselect_b32 s14, {TAB_SZ}, 0
    s_cselect_b32 s18, {TAB_SZ}, 0""")
    idx_reads(a, 0, 0)
    a("s_waitcnt lgkmcnt(0)")
    for x in issue_list(0):
        a(x)
    a("s_cmp_eq_u32 s42, 0\ns_cbranch_scc1 K2_NOGEMM")
    XA, WB = 64, 80
    a(f"""s_mul_i32 s52, s43, 25
    s_add_u32 s52, s52, 1
    s_lshr_b32 s52, s52, 1
    v_and_b32 v{VT2}, 63, v{VTID}
    v_and_b32 v{VT0}, 15, v{VT2}
    v_add_u32 v{VT0}, s52, v{VT0}
    v_lshrrev_b32 v{VT1}, 4, v{VT2}
    v_xor_b32 v{VT1}, v{VT1}, v{VT0}
    v_and_b32 v{VT1}, 15, v{VT1}
    v_lshlrev_b32 v{VT1}, 4, v{VT1}
    v_lshl_add_u32 v{VT0}, v{VT0}, 8, v{VT1}
    v_add_u32 v{VT0}, {XR}, v{VT0}
    v_lshlrev_b32 v{VT2}, 4, v{VT2}
    v_add_u32 v{VT2}, {WFL}, v{VT2}""")
    for s in range(4):
        a(f"v_xor_b32 v{VT1}, {s*64}, v{VT0}\nds_read_b128 {q4(XA+4*s)}, v{VT1}")
    DEPTH = 8
    for f in range(64 + DEPTH):
        if f >= DEPTH:
            ff = f - DEPTH
            mat, b, s = ff >> 5, (ff >> 2) & 7, ff & 3
            d = (ACC if mat else P) + 4 * b
            a(f"s_waitcnt lgkmcnt({min(DEPTH-1, 63-ff)})")
            a(mf16(d, XA + 4 * s, WB + 4 * (ff % (DEPTH + 2)), "0" if s == 0 else q4(d)))
        if f < 64:
            a(f"ds_read_b128 {q4(WB+4*(f%(DEPTH+2)))}, v{VT2} offset:{f*1024}")
    a(f"s_mov_b32 s37, {NEG_LOG2E}")
    for i in range(32):
        a(f"v_mul_f32 v{P+i}, s37, v{P+i}")
    for b in range(8):
        a(f"v_cvt_pk_bf16_f32 v{BOP+4*b+2}, v{P+4*b}, v{P+4*b+1}\nv_cvt_pk_bf16_f32 v{BOP+4*b+3}, v{P+4*b+2}, v{P+4*b+3}")
    a("s_nop 1")
    for b in range(8):
        a(f"v_permlane32_swap_b32 v{BOP+4*b}, v{BOP+4*b+2}\nv_permlane32_swap_b32 v{BOP+4*b+1}, v{BOP+4*b+3}")
    a.label("K2_NOGEMM")
    stamp(a, opt, 4, 1)
    a(f"""s_cmp_lt_u32 1, s45
    s_cselect_b32 s14, {TAB_SZ}, 0
    s_cselect_b32 s18, {TAB_SZ}, 0""")
    idx_reads(a, 1, 1)
    a("s_waitcnt lgkmcnt(0)")
    for x in issue_list(1):
        a(x)
    a("s_mov_b32 s46, 0\ns_cmp_eq_u32 s45, 0\ns_cbranch_scc1 K2_TDONE")
    a("s_waitcnt vmcnt(34) lgkmcnt(0)")
    for t in range(4):
        a(mf16(P + 4 * t, GA, BOP + 4 * t, "0"))
    a("s_nop 7")
    a(".p2align 6")
    a.label("K2_LOOP")
    tile(a, opt, 0, 0)
    a("s_cmp_ge_u32 s46, s45\ns_cbranch_scc1 K2_TDONE")
    tile(a, opt, 1, 1)
    a(f"""v_add_u32 v{PSRC}, 256, v{PSRC}
    v_add_u32 v{PG}, 256, v{PG}
    v_add_u32 v{PD}, 256, v{PD}
    s_cmp_lt_u32 s46, s45
    s_cbranch_scc1 K2_LOOP""")
    a.label("K2_TDONE")
    stamp(a, opt, 5, 1)
    a("""s_waitcnt vmcnt(0) lgkmcnt(0)
    s_mov_b32 s42, 0
    s_cmp_lg_u32 s48, 0
    s_cbranch_scc1 K2_AGAIN
    s_add_u32 s40, s40, s41
    s_cmp_ge_u32 s40, 500
    s_cbranch_scc1 K2_EPI""")
    a.label("K2_AGAIN")
    a("s_barrier\ns_branch K2_ROUND")
    a.label("K2_EPI")
    a(f"""s_mul_i32 s53, s43, 25
    s_add_u32 s53, s53, 26
    s_lshr_b32 s53, s53, 1
    s_sub_u32 s53, s53, s52
    v_and_b32 v2, 63, v{VTID}
    v_lshrrev_b32 v3, 4, v2
    v_lshlrev_b32 v3, 2, v3
    v_and_b32 v4, 15, v2
    v_add_u32 v5, s52, v3
    v_lshlrev_b32 v5, 8, v5
    v_lshl_add_u32 v5, v4, 3, v5
    s_mov_b32 s37, {NEG_LOG2E}
    v_mov_b32 v6, 0x7ffffff0""")
    for r in range(4):
        a(f"""v_add_u32 v7, {r}, v3
        v_cmp_gt_u32 vcc, s53, v7
        s_nop 1
        v_cndmask_b32 v{8+r}, v6, v5, vcc""")
    for i in range(32):
        a(f"v_mul_f32 v{16+i}, s37, v{ACC+i}")
    for i in range(32):
        a(f"v_exp_f32 v{16+i}, v{16+i}")
    for i in range(32):
        a(f"v_add_f32 v{16+i}, 1.0, v{16+i}")
    for i in range(32):
        a(f"v_rcp_f32 v{16+i}, v{16+i}")
    for i in range(32):
        a(f"v_mul_f32 v{16+i}, v{16+i}, v{ACC+i}")
    for r in range(4):
        for hh in range(2):
            o = 48 + (r * 2 + hh) * 2
            y = lambda t: 16 + (4 * hh + t) * 4 + r
            a(f"v_cvt_pk_bf16_f32 v{o}, v{y(0)}, v{y(1)}\nv_cvt_pk_bf16_f32 v{o+1}, v{y(2)}, v{y(3)}")
            a(f"buffer_store_dwordx2 v[{o}:{o+1}], v{8+r}, s[28:31], 0 offen offset:{r*256+hh*128}")
    stamp(a, opt, 6, 1)
    if opt.get("stamp"):
        stamp_flush(a, opt, 7, 1, 10, 11, 33)
    a.label("K2_END")
    a("s_endpgm")
    return a, K2_LDS


HEADER = """; Edge-gated message passing layer, two launches.
"""


def kd(name, nv, ns):
    return f""".p2align 6
.amdhsa_kernel {name}
  .amdhsa_next_free_vgpr {nv}
  .amdhsa_next_free_sgpr {ns}
  .amdhsa_accum_offset {(nv+3)//4*4}
  .amdhsa_group_segment_fixed_size 0
  .amdhsa_kernarg_size 80
  .amdhsa_user_sgpr_count 2
  .amdhsa_user_sgpr_kernarg_segment_ptr 1
  .amdhsa_system_sgpr_workgroup_id_x 1
.end_amdhsa_kernel
"""


def build(opt):
    k1, l1 = gen_k1(opt)
    k2, l2 = gen_k2(opt)
    for nm, k in (("k1", k1), ("k2", k2)):
        for pr in lint(k.lines):
            print(f"LINT {nm}: need {pr[2]} have {pr[3]}: {pr[4]}  ->  {pr[5]}", file=sys.stderr)
    s = HEADER
    s += f"; @launch kernel=k1_kernel grid=(256,1,1) block=(512,1,1) lds={l1}\n"
    s += f"; @launch kernel=k2_kernel grid=(256,1,1) block=(512,1,1) lds={l2}\n"
    s += '.amdgcn_target "amdgcn-amd-amdhsa--gfx950"\n.text\n'
    for nm, k in (("k1_kernel", k1), ("k2_kernel", k2)):
        s += f".globl {nm}\n.p2align 8\n.type {nm},@function\n" + k.text()
    s += '.section .rodata,"a"\n' + kd("k1_kernel", 224, 102) + kd("k2_kernel", 256, 102)
    return s


if __name__ == "__main__":
    opt = {}
    out = f"cdna_kernels/{NAME}.s"
    for arg in sys.argv[1:]:
        if arg.startswith("-o"):
            out = arg[2:]
        else:
            k, _, v = arg.partition("=")
            opt[k] = int(v) if v else 1
    open(out, "w").write(build(opt))
    print("wrote", out)
```

```python
import sys
from asmlib import Asm, lint

NAME = "standalone__edge_featured_mpnn_egc__graph"
NEG_LOG2E = 0xBFB8AA3B
TAB, TAB_SZ = 0, 12800000
REC = 0x0D00000
OFF = 0x0F00000
WF = 0x0F80000
CF = 0x0F90000
STAMP = 0x2000000
WS_USED = 0x1000000
EAS = 0x1000000


def srd(a, d, lo, hi, size, add=None):
    if add is None:
        a(f"s_mov_b32 s{d}, s{lo}\ns_mov_b32 s{d+1}, s{hi}")
    else:
        a(f"s_add_u32 s{d}, s{lo}, {add}\ns_addc_u32 s{d+1}, s{hi}, 0")
    a(f"s_mov_b32 s{d+2}, {size}\ns_mov_b32 s{d+3}, 0x20000")


def stamp(a, opt, idx, kern):
    if opt.get("stamp"):
        a(f"s_memrealtime s[{70+2*idx}:{71+2*idx}]")


def stamp_flush(a, opt, n, kern, ws_lo, ws_hi, swave):
    if not opt.get("stamp"):
        return
    a("s_mov_b64 exec, -1")
    a("s_waitcnt lgkmcnt(0) vmcnt(0)")
    srd(a, 96, ws_lo, ws_hi, 0x100000, add=STAMP + kern * 0x40000)
    a(f"s_lshl_b32 s68, s2, 3\ns_add_u32 s68, s68, s{swave}\ns_lshl_b32 s68, s68, 6")
    a("v_mov_b32 v1, 0")
    for i in range(n):
        a(f"v_mov_b32 v0, s{70+2*i}")
        a(f"buffer_store_dword v0, v1, s[96:99], s68 offen offset:{4*i}")
    if kern == 1:
        a("s_getreg_b32 s69, hwreg(HW_REG_HW_ID)")
        a(f"v_and_b32 v2, 63, v{VTID}\nv_lshlrev_b32 v2, 2, v2\ns_lshl_b32 s94, s68, 2\ns_add_u32 s94, s94, 0x40000")
        a(f"buffer_store_dword v{VEND}, v2, s[96:99], s94 offen")
        for j, sr in enumerate((69, 45, 44, 43)):
            a(f"v_mov_b32 v0, s{sr}")
            a(f"buffer_store_dword v0, v1, s[96:99], s68 offen offset:{4*(12+j)}")
    a("s_waitcnt vmcnt(0)")


def gen_k1(opt):
    a = Asm()
    HIST, HIST2, BASE, BASE2, STAGE, INV, JUNK, XL, WL, EAL = 0, 2048, 2560, 4608, 5120, 11520, 17920, 19456, 45056, 110592
    a.label("k1_kernel")
    a("s_cmp_ge_u32 s2, 256\ns_cbranch_scc1 K1_END")
    stamp(a, opt, 0, 0)
    a("""s_load_dwordx4 s[4:7], s[0:1], 0
    s_load_dwordx4 s[8:11], s[0:1], 16
    s_load_dwordx4 s[12:15], s[0:1], 32
    s_load_dwordx2 s[16:17], s[0:1], 48
    s_load_dwordx2 s[18:19], s[0:1], 72
    v_lshrrev_b32 v1, 6, v0
    v_and_b32 v2, 63, v0
    v_readfirstlane_b32 s20, v1
    s_cmp_ge_u32 s2, 250
    s_cbranch_scc1 K1_PREP""")
    a(f"""v_and_b32 v3, 255, v0
    v_lshrrev_b32 v7, 8, v0
    v_mul_u32_u24 v4, 3200, v7
    v_lshl_add_u32 v4, v3, 4, v4
    v_lshlrev_b32 v5, 10, v7
    v_lshlrev_b32 v37, 8, v7
    v_mov_b32 v6, 4
    v_lshlrev_b32 v8, 2, v0
    v_mov_b32 v9, 0
    ds_write_b32 v8, v9
    ds_write_b32 v8, v9 offset:512
    s_movk_i32 s21, 200
    v_cmp_gt_u32 s[56:57], s21, v3
    s_mul_i32 s22, s2, 6400
    s_mul_i32 s23, s2, 25600
    s_waitcnt lgkmcnt(0)""")
    srd(a, 24, 10, 11, 6400, add="s22")
    srd(a, 28, 8, 9, 6400, add="s22")
    a("s_mov_b64 exec, s[56:57]")
    nt = lambda bit: " nt" if opt.get("nt", 0) & bit else ""
    a("buffer_load_dwordx4 v[10:13], v4, s[24:27], 0 offen" + nt(1))
    a("buffer_load_dwordx4 v[14:17], v4, s[28:31], 0 offen" + nt(1))
    a("s_mov_b64 exec, -1")
    srd(a, 32, 4, 5, 25600, add="s23")
    srd(a, 36, 16, 17, 32768, add=32768)
    srd(a, 40, 14, 15, 32768)
    a("s_barrier")
    a(f"""v_lshrrev_b32 v18, 4, v2
    s_lshl_b32 s58, s20, 2
    v_add_u32 v19, s58, v18
    v_xor_b32 v20, v19, v2
    v_and_b32 v20, 15, v20
    v_lshlrev_b32 v20, 4, v20
    v_lshl_add_u32 v20, v19, 8, v20
    s_lshl_b32 s59, s20, 10
    s_add_u32 s60, s59, {XL}""")
    for st in range(4):
        if st < 3:
            a(f"s_add_u32 m0, s60, {st*8192}")
        else:
            a(f"s_add_u32 s60, s60, {3*8192}\ns_cmp_eq_u32 s20, 0\ns_cselect_b32 m0, s60, {JUNK}")
        if st:
            a("v_add_u32 v20, 8192, v20")
        else:
            a("s_nop 0")
        a("buffer_load_dwordx4 v20, s[32:35], 0 offen" + nt(4) + " lds")
    a(f"""v_lshlrev_b32 v21, 2, v18
    v_xor_b32 v21, v21, v2
    v_and_b32 v21, 15, v21
    v_lshlrev_b32 v21, 4, v21
    v_lshl_add_u32 v21, v18, 8, v21
    s_lshl_b32 s59, s20, 12
    s_add_u32 s60, s59, {WL}""")
    for mat, s in ((0, 36), (1, 40)):
        a(f"s_add_u32 m0, s60, {mat*32768}\ns_nop 0")
        for k in range(4):
            a(f"buffer_load_dwordx4 v21, s[{s}:{s+3}], s59 offen offset:{k*1024} lds")
    a("s_mul_i32 s23, s2, 51200")

    def ea_dma():
        srd(a, 32, 6, 7, 51200, add="s62")
        a(f"""v_lshlrev_b32 v21, 4, v0
        s_lshl_b32 s59, s20, 10
        s_add_u32 s60, s59, {EAL}""")
        for st in range(7):
            if st < 6:
                a(f"s_add_u32 m0, s60, {st*8192}")
            else:
                a(f"s_add_u32 s60, s60, {6*8192}\ns_cmp_lt_u32 s20, 2\ns_cselect_b32 m0, s60, {JUNK}")
            a("v_add_u32 v21, 8192, v21" if st else "s_nop 0")
            a("buffer_load_dwordx4 v21, s[32:35], 0 offen" + nt(2) + " lds")
    a("s_mov_b32 s62, s23")
    eaw = opt.get("eaw", 1)
    if eaw == 0:
        ea_dma()
    a("s_add_u32 s22, s22, %d" % REC)
    srd(a, 44, 18, 19, 6400, add="s22")
    a("s_lshl_b32 s22, s2, 11\ns_add_u32 s22, s22, %d" % OFF)
    srd(a, 48, 18, 19, 2048, add="s22")
    srd(a, 52, 18, 19, 51200, add="s23")
    a(f"s_add_u32 s23, s23, {EAS}")
    srd(a, 24, 18, 19, 51200, add="s23")
    a("s_waitcnt vmcnt(%d)" % (19 if eaw == 0 else 12))
    stamp(a, opt, 1, 0)
    if eaw == 1:
        ea_dma()
    a("s_mov_b64 exec, s[56:57]")
    for k in range(4):
        d, s_, b, dl, g, t, rk, b2, rk2 = 10 + k, 14 + k, 24 + k, 28, 29, 30, 32 + k, 52 + k, 56 + k
        a(f"""v_mul_u32_u24 v{b}, 5243, v{d}
        v_lshrrev_b32 v{b}, 19, v{b}
        v_lshrrev_b32 v{t}, 12, v{s_}
        v_and_b32 v{b2}, 0xe0, v{b}
        v_mul_u32_u24 v{dl}, 100, v{b}
        v_lshl_add_u32 v{b}, v{b}, 2, v5
        ds_add_rtn_u32 v{rk}, v{b}, v6 offset:{HIST}
        v_lshl_add_u32 v{b2}, v{t}, 2, v{b2}
        v_add_u32 v{b2}, v{b2}, v37
        ds_add_rtn_u32 v{rk2}, v{b2}, v6 offset:{HIST2}
        v_sub_u32 v{dl}, v{d}, v{dl}
        v_mul_u32_u24 v{g}, 2622, v{dl}
        v_lshrrev_b32 v{g}, 15, v{g}
        v_mad_u32_u24 v{t}, v{g}, 25, 1
        v_lshrrev_b32 v{t}, 1, v{t}
        v_sub_u32 v{dl}, v{dl}, v{t}
        v_lshlrev_b32 v{g}, 29, v{g}
        v_lshl_or_b32 v{g}, v{s_}, 14, v{g}
        v_lshl_or_b32 v{s_}, v{dl}, 10, v{g}""")
    a("s_mov_b64 exec, -1")
    a("s_waitcnt lgkmcnt(0)\ns_barrier")
    if eaw == 2:
        ea_dma()
    a(f"""v_lshl_add_u32 v36, v2, 4, v5
    v_lshl_add_u32 v38, v2, 2, v37
    ds_read_b128 v[40:43], v36 offset:{HIST}
    ds_read_b32 v39, v38 offset:{HIST2}
    s_waitcnt lgkmcnt(0)
    v_add_u32 v41, v41, v40
    v_add_u32 v42, v42, v41
    v_add_u32 v43, v43, v42
    v_mov_b32 v44, v43
    v_mov_b32 v51, v39
    s_nop 0""")
    for m in ("row_shr:1 row_mask:0xf", "row_shr:2 row_mask:0xf", "row_shr:4 row_mask:0xf", "row_shr:8 row_mask:0xf",
              "row_bcast:15 row_mask:0xa", "row_bcast:31 row_mask:0xc"):
        a(f"v_add_u32_dpp v44, v44, v44 {m} bank_mask:0xf\nv_add_u32_dpp v51, v51, v51 {m} bank_mask:0xf\ns_nop 0")
    a(f"""v_sub_u32 v44, v44, v43
    v_sub_u32 v51, v51, v39
    v_add_u32 v45, v44, v40
    v_add_u32 v46, v44, v41
    v_add_u32 v47, v44, v42
    ds_write_b128 v36, v[44:47] offset:{BASE}
    ds_write_b32 v38, v51 offset:{BASE2}
    s_and_b32 s61, s20, 3
    s_cmp_lg_u32 s61, 0
    v_add_u32 v63, v44, v43
    v_lshl_or_b32 v60, v45, 16, v44
    v_lshl_or_b32 v61, v46, 16, v45
    v_lshl_or_b32 v62, v47, 16, v46
    v_lshl_or_b32 v63, v63, 16, v47
    v_mov_b32 v50, v36
    s_cbranch_scc0 K1_DOOFF
    v_mov_b32 v50, 0x7ffffff0""")
    a.label("K1_DOOFF")
    a("buffer_store_dwordx4 v[60:63], v50, s[48:51], 0 offen")
    a("s_waitcnt lgkmcnt(0)\ns_mov_b64 exec, s[56:57]")
    for k in range(4):
        a(f"ds_read_b32 v{24+k}, v{24+k} offset:{BASE}\nds_read_b32 v{52+k}, v{52+k} offset:{BASE2}")
    a("v_mul_u32_u24 v23, 3200, v7\nv_lshlrev_b32 v22, 3, v4\ns_waitcnt lgkmcnt(0)")
    for k in range(4):
        a(f"""v_add_u32 v{52+k}, v{52+k}, v{56+k}
        v_add3_u32 v{24+k}, v{24+k}, v{32+k}, v23
        v_lshrrev_b32 v28, 2, v{52+k}
        v_add_u32 v{52+k}, v{52+k}, v23
        v_or_b32 v{14+k}, v{14+k}, v28
        v_add_u32 v29, {EAL+32*k}, v22
        ds_write_b32 v{24+k}, v{14+k} offset:{STAGE}
        ds_write_b32 v{52+k}, v29 offset:{INV}""")
    a("s_mov_b64 exec, -1")
    a("s_waitcnt vmcnt(8) lgkmcnt(0)\ns_barrier")
    stamp(a, opt, 2, 0)
    a(f"""s_mov_b64 exec, s[56:57]
    ds_read_b128 v[10:13], v4 offset:{STAGE}
    s_mov_b64 exec, -1""")
    a(f"""s_and_b32 s62, s20, 3
    s_lshr_b32 s63, s20, 2
    v_bfe_u32 v18, v2, 2, 2
    v_bfe_u32 v19, v2, 4, 1
    v_bfe_u32 v20, v2, 1, 1
    v_lshl_add_u32 v19, v19, 1, v20
    s_lshl_b32 s64, s62, 2
    v_add_u32 v19, s64, v19
    v_lshlrev_b32 v20, 2, v18
    v_xor_b32 v19, v19, v20
    v_lshrrev_b32 v21, 5, v2
    v_lshl_add_u32 v20, v21, 3, v18
    v_lshlrev_b32 v20, 8, v20
    v_lshl_add_u32 v20, v19, 4, v20
    v_and_b32 v19, 1, v2
    v_lshl_add_u32 v20, v19, 3, v20
    v_add_u32 v20, {WL}, v20
    s_waitcnt lgkmcnt(0)
    s_mov_b64 exec, s[56:57]
    buffer_store_dwordx4 v[10:13], v4, s[44:47], 0 offen
    s_mov_b64 exec, -1""")
    a(f"""v_and_b32 v18, 31, v2
    v_xor_b32 v22, v21, v18
    v_and_b32 v22, 15, v22
    v_lshlrev_b32 v22, 4, v22
    v_lshl_add_u32 v22, v18, 8, v22
    s_lshl_b32 s64, s63, 13
    s_add_u32 s64, s64, {XL}
    v_add_u32 v22, s64, v22
    v_lshrrev_b32 v23, 3, v2
    v_lshlrev_b32 v23, 9, v23
    v_and_b32 v19, 7, v2
    v_lshl_add_u32 v23, v19, 4, v23
    s_lshl_b32 s64, s63, 14
    s_lshl_b32 s65, s62, 7
    s_add_u32 s64, s64, s65
    v_add_u32 v23, s64, v23
    s_lshl_b32 s64, s20, 12
    s_add_u32 s64, s64, {WL}
    v_lshl_add_u32 v16, v2, 4, s64
    v_lshlrev_b32 v17, 9, v21
    v_lshl_add_u32 v17, v18, 2, v17
    v_add_u32 v17, s64, v17""")
    for s in range(8):
        a(f"v_xor_b32 v{24+s}, {s*32}, v22")
    for s in range(8):
        a(f"ds_read_b128 v[{32+4*s}:{35+4*s}], v{24+s}")
    cnt = 8
    for s in range(8):
        for mat in range(2):
            for jj in range(2):
                r = 64 + mat * 32 + s * 4 + jj * 2
                a(f"ds_read_b64_tr_b16 v[{r}:{r+1}], v20 offset:{mat*32768+s*4096+jj*1024}")
                cnt += 1
        if s >= 1:
            a("s_waitcnt lgkmcnt(4)")
            p = s - 1
            a(f"v_mfma_f32_32x32x16_bf16 v[128:143], v[{32+4*p}:{35+4*p}], v[{64+4*p}:{67+4*p}], {'0' if p==0 else 'v[128:143]'}")
            a(f"v_mfma_f32_32x32x16_bf16 v[144:159], v[{32+4*p}:{35+4*p}], v[{96+4*p}:{99+4*p}], {'0' if p==0 else 'v[144:159]'}")
    a("s_waitcnt lgkmcnt(0)")
    a("v_mfma_f32_32x32x16_bf16 v[128:143], v[60:63], v[92:95], v[128:143]")
    a("v_mfma_f32_32x32x16_bf16 v[144:159], v[60:63], v[124:127], v[144:159]")
    for s in range(8):
        a(f"ds_read_b128 v[{192+4*s}:{195+4*s}], v{24+s} offset:16384")
    a(f"s_mov_b32 s64, {NEG_LOG2E}\ns_mov_b32 s65, 0x7fff0000\ns_mov_b32 s66, 0xffff")
    a("v_mov_b32 v15, 0x42fc0000\ns_mov_b32 s68, 0xc2fc0000\ns_barrier")
    for s in range(8):
        a(f"s_waitcnt lgkmcnt({7-s})")
        a(f"v_mfma_f32_32x32x16_bf16 v[160:175], v[{192+4*s}:{195+4*s}], v[{64+4*s}:{67+4*s}], {'0' if s==0 else 'v[160:175]'}")
        a(f"v_mfma_f32_32x32x16_bf16 v[176:191], v[{192+4*s}:{195+4*s}], v[{96+4*s}:{99+4*s}], {'0' if s==0 else 'v[176:191]'}")

    def pack(xb, hv, g):
        for r in range(4):
            x, h, t = xb + 4 * g + r, hv + 4 * g + r, 32 + r
            if opt.get("f16"):
                a(f"""v_mul_f32 v{x}, s64, v{x}
                v_cvt_f16_f32 v{h}, v{h}
                v_med3_f32 v{x}, v{x}, s68, v15
                v_and_b32 v{h}, 0xffff, v{h}
                v_exp_f32 v{x}, v{x}
                v_sub_u32 v{t}, 0x8000, v{h}
                v_add_u32 v{x}, v{x}, v{t}
                v_bfi_b32 v{x}, s66, v{h}, v{x}""")
            else:
                a(f"""v_mul_f32 v{x}, s64, v{x}
                v_and_b32 v{t}, 0x7fffffff, v{h}
                v_cvt_f16_f32 v{x}, v{x}
                v_add_u32 v{t}, 0x8000, v{t}
                v_and_b32 v{x}, 0xffff, v{x}
                v_sub_u32_e64 v{t}, v{t}, v{x} clamp
                v_bfi_b32 v{t}, s65, v{t}, v{h}
                v_bfi_b32 v{x}, s66, v{x}, v{t}""")
            a(f"ds_write_b32 v17, v{x} offset:{g*1024+r*128}")

    def flush(tidx, ks, buf):
        for k in ks:
            a(f"ds_read_b128 v[{buf+4*k}:{buf+4*k+3}], v16 offset:{k*1024}")
        for k in ks:
            a(f"s_mov_b32 s67, {k*4096+tidx*32768}\ns_waitcnt lgkmcnt({len(ks)-1-k})")
            a(f"buffer_store_dwordx4 v[{buf+4*k}:{buf+4*k+3}], v23, s[52:55], s67 offen")

    stamp(a, opt, 3, 0)
    for g in range(4):
        pack(128, 144, g)
    flush(0, range(4), 40)
    a("s_cmp_eq_u32 s63, 1\ns_cbranch_scc0 K1_FULL2")
    pack(160, 176, 0)
    a("s_mov_b32 exec_hi, 0")
    flush(1, range(1), 64)
    a("s_branch K1_FIN")
    a.label("K1_FULL2")
    for g in range(4):
        pack(160, 176, g)
    flush(1, range(4), 64)
    a.label("K1_FIN")
    stamp(a, opt, 4, 0)
    a(f"""s_mov_b64 exec, -1
    v_lshrrev_b32 v10, 1, v0
    v_lshlrev_b32 v10, 2, v10
    v_and_b32 v11, 1, v0
    v_lshlrev_b32 v11, 4, v11
    v_lshlrev_b32 v12, 4, v0""")
    for n in range(7):
        a(f"ds_read_b32 v{16+n}, v10 offset:{INV+1024*n}")
    a("s_waitcnt vmcnt(%d)\ns_barrier" % opt.get("k1w", 7))
    a("s_waitcnt lgkmcnt(0)")
    for n in range(7):
        a(f"v_add_u32 v{16+n}, v{16+n}, v11\nds_read_b128 v[{32+4*n}:{35+4*n}], v{16+n}")
    for n in range(7):
        a(f"s_waitcnt lgkmcnt({6-n})")
        if n:
            a("v_add_u32 v12, 8192, v12")
        a(f"buffer_store_dwordx4 v[{32+4*n}:{35+4*n}], v12, s[24:27], 0 offen")
    if opt.get("stamp"):
        a("s_waitcnt vmcnt(0)")
        stamp(a, opt, 5, 0)
        stamp_flush(a, opt, 6, 0, 18, 19, 20)
    a("s_endpgm")

    a.label("K1_PREP")
    a("""s_sub_u32 s21, s2, 250
    s_lshl_b32 s21, s21, 3
    s_add_u32 s21, s21, s20
    v_lshrrev_b32 v3, 4, v2
    v_and_b32 v4, 15, v2
    v_lshlrev_b32 v5, 11, v3
    v_lshl_add_u32 v5, v4, 3, v5
    v_lshlrev_b32 v6, 4, v2
    v_lshlrev_b32 v7, 10, v3
    v_lshl_add_u32 v7, v4, 3, v7
    v_lshlrev_b32 v8, 5, v4
    v_lshl_add_u32 v8, v3, 3, v8
    s_waitcnt lgkmcnt(0)""")
    srd(a, 24, 16, 17, 272 * 256)
    srd(a, 28, 12, 13, 32768)
    srd(a, 32, 18, 19, 0x20000, add=WF)
    a.label("K1_PTASK")
    a("""s_cmp_ge_u32 s21, 64
    s_cbranch_scc1 K1_PC
    s_bfe_u32 s40, s21, 0x30002
    s_and_b32 s41, s21, 3
    s_lshl_b32 s41, s41, 13
    s_lshr_b32 s42, s40, 2
    s_lshl_b32 s42, s42, 7
    s_and_b32 s43, s40, 3
    s_lshl_b32 s43, s43, 1
    s_add_u32 s41, s41, s42
    s_add_u32 s41, s41, s43
    s_lshl_b32 s44, s21, 10
    s_cmp_ge_u32 s21, 32
    s_cbranch_scc1 K1_PU""")
    for j in range(8):
        a(f"buffer_load_ushort v{16+j}, v5, s[24:27], s41 offen offset:{j*256}")
    a("s_branch K1_PW")
    a.label("K1_PU")
    for j in range(8):
        a(f"buffer_load_ushort v{16+j}, v5, s[28:31], s41 offen offset:{j*256}")
    a.label("K1_PW")
    a("s_waitcnt vmcnt(0)")
    for j in range(4):
        a(f"v_lshl_or_b32 v{24+j}, v{17+2*j}, 16, v{16+2*j}")
    a("buffer_store_dwordx4 v[24:27], v6, s[32:35], s44 offen")
    a("s_add_u32 s21, s21, 48\ns_cmp_lt_u32 s21, 72\ns_cbranch_scc1 K1_PTASK\ns_endpgm")
    a.label("K1_PC")
    a(f"""s_sub_u32 s40, s21, 64
    s_lshr_b32 s42, s40, 2
    s_lshl_b32 s42, s42, 7
    s_and_b32 s43, s40, 3
    s_lshl_b32 s43, s43, 1
    s_add_u32 s41, s42, s43
    s_add_u32 s41, s41, 65536
    s_lshl_b32 s44, s40, 9
    s_add_u32 s44, s44, {CF-WF}
    s_mov_b32 s45, {NEG_LOG2E}""")
    for j in range(4):
        a(f"buffer_load_ushort v{16+j}, v7, s[24:27], s41 offen offset:{j*256}")
    a("s_waitcnt vmcnt(0)")
    for j in range(4):
        a(f"v_lshlrev_b32 v{16+j}, 16, v{16+j}")
    for j in range(4):
        a(f"v_mul_f32 v{16+j}, s45, v{16+j}")
    a("v_cvt_pk_bf16_f32 v24, v16, v17\nv_cvt_pk_bf16_f32 v25, v18, v19")
    a("buffer_store_dwordx2 v[24:25], v8, s[32:35], s44 offen")
    a.label("K1_END")
    a("s_endpgm")
    return a, 161792


HIST, BASE, FLAG, PROG, TG, TS = 0, 256, 512, 576, 1024, 1536
GSTR = 352 * 4
LSD = 2048
LEA = LSD + 8 * GSTR
XR = LEA + 8 * GSTR
JUNK2 = XR + 104 * 256
CFL = JUNK2 + 1024
XAL = CFL + 4096
XUL = XAL + 32768
K2_LDS = XUL + 65536
CAP4 = 320 * 4
ACC, BOP, P, Z, GA, SA = 128, 160, 192, 208, 224, 240
VLANE, VGC, VSC, PSRC, PG, PD, VTID, VCUR, VEND, VGM, VT0, VT1 = range(244, 256)
SHIFT_BIN = 24


def G(slot, s, r, hh, t=0):
    return slot * 64 + s * 32 + r * 8 + hh * 4 + t


def q4(r):
    return f"v[{r}:{r+3}]"


def idx_reads(a, slot, toff):
    a(f"ds_read_b128 {q4(G(slot,1,0,0))}, v{PSRC} offset:{toff*128}")
    a(f"ds_read_b128 {q4(G(slot,1,1,0))}, v{PSRC} offset:{toff*128+64}")
    r = G(slot, 1, 2, 0)
    a(f"ds_read2_b32 v[{r}:{r+1}], v{PG} offset0:{toff*32} offset1:{toff*32+16}")


def issue_parts(slot):
    r = G(slot, 1, 2, 0)
    ga = GA + slot * 8
    addr = [f"v_and_or_b32 v{ga}, v{r}, v{VGM}, v{VGC}", f"v_and_or_b32 v{ga+4}, v{r+1}, v{VGM}, v{VGC}"]
    for s in range(2):
        for rr in range(4):
            addr.append(f"v_and_or_b32 v{G(slot,s,rr,1)}, v{G(slot,1,s,0)+rr}, s55, v{VLANE}")
    masked = ["s_mov_b32 exec_hi, 0",
              f"buffer_load_dwordx4 {q4(ga)}, v{ga}, s[16:19], 0 offen",
              f"buffer_load_dwordx4 {q4(ga+4)}, v{ga+4}, s[16:19], 0 offen",
              "s_mov_b64 exec, s[50:51]",
              f"ds_read_b128 {q4(ga)}, v{ga}",
              f"ds_read_b128 {q4(ga+4)}, v{ga+4}",
              "s_mov_b64 exec, -1"]
    loads = []
    for s in range(2):
        for hh in range(2):
            for rr in range(4):
                off = " offset:256" if hh else ""
                loads.append(f"buffer_load_dwordx4 {q4(G(slot,s,rr,hh))}, v{G(slot,s,rr,1)}, s[12:15], 0 offen{off}")
    return addr, masked, loads


def mf16(d, aa, b, c):
    return f"v_mfma_f32_16x16x32_bf16 {q4(d)}, {q4(aa)}, {q4(b)}, {c}"


def mf16h(d, aa, b, c):
    return f"v_mfma_f32_16x16x16_bf16 {q4(d)}, v[{aa}:{aa+1}], v[{b}:{b+1}], {c}"


def weave(a, main, extra, start=0, step=1):
    e = list(extra)
    for i, m in enumerate(main):
        a(m)
        if e and i >= start and (i - start) % step == 0:
            a(e.pop(0))
    for x in e:
        a(x)


def enable_srds(a, opt):
    a(f"s_cselect_b32 s14, {0 if opt.get('notab') else TAB_SZ}, 0\ns_cselect_b32 s18, {0 if opt.get('noea') else TAB_SZ}, 0")


def tile(a, opt, slot, toff, half=False):
    pk = opt.get("pk", 1)
    f16 = opt.get("f16", 0)
    dyn = opt.get("prio") == 2 and not half
    ga = GA + slot * 8
    gan = GA + (1 - slot) * 8
    addr, masked, loads = issue_parts(1 - slot)
    nl = opt.get("spread", (8, 8, 0, 0))
    issued = 0
    if opt.get("stamp"):
        a("s_memrealtime s[94:95]")
    a(f"ds_read2_b32 v[{SA}:{SA+1}], v{PD} offset0:{toff*32} offset1:{toff*32+16}")
    if dyn:
        a(f"v_mov_b32 v{VT1}, s46\nds_write2_b32 v{VT0}, v{VT1}, v{VT1} offset0:{PROG//4} offset1:{PROG//4+16}\nds_read_b32 v{VT1}, v{VT0} offset:{PROG+32}")
    if not half:
        a("s_add_u32 s46, s46, 1\ns_cmp_lt_u32 s46, s45")
        enable_srds(a, opt)
    seg_pending = []
    for ph in range(2 if half else 4):
        s, hh = ph >> 1, ph & 1
        if ph == 3:
            gate = [mf16(P + 4 * t, gan, BOP + 4 * t, "0") for t in range(4)]
        elif half and ph == 1:
            gate = []
        else:
            ns, nh = (ph + 1) >> 1, (ph + 1) & 1
            gate = [mf16(P + 4 * t, ga + 4 * ns, BOP + 16 * nh + 4 * t, "0") for t in range(4)]
        if f16:
            first = [f"v_exp_f32 v{Z+4*r+t}, v{P+4*t+r}" for t in range(4) for r in range(4)]
        else:
            a(f"s_waitcnt vmcnt({12-4*ph+issued})")
            first = [f"v_fma_mix_f32 v{Z+4*r+t}, v{G(slot,s,r,hh,t)}, 1.0, v{P+4*t+r} op_sel_hi:[1,0,0]"
                     for t in range(4) for r in range(4)]
        weave(a, first, seg_pending, start=1, step=1 if f16 else 2)
        seg_pending = []
        if f16:
            a(f"s_waitcnt vmcnt({12-4*ph+issued})")
        mine = []
        if ph == 0:
            a("s_waitcnt lgkmcnt(0)")
            if opt.get("stamp"):
                a(f"s_sub_u32 m0, s46, {0 if half else 1}\nv_writelane_b32 v{VEND}, s94, m0")
            if dyn:
                a(f"v_readfirstlane_b32 s56, v{VT1}")
            a(f"v_and_or_b32 v{SA+2}, v{SA+1}, s54, v{VSC}\nv_and_or_b32 v{SA}, v{SA}, s54, v{VSC}")
            a(f"ds_read_b64_tr_b16 v[{SA+2}:{SA+3}], v{SA+2}\nds_read_b64_tr_b16 v[{SA}:{SA+1}], v{SA}")
            if dyn:
                lab = f"K2_PR{slot}"
                a(f"s_add_u32 s56, s56, 1\ns_setprio 1\ns_cmp_gt_u32 s46, s56\ns_cbranch_scc0 {lab}\ns_setprio 0")
                a.label(lab)
            if not half:
                for x in addr + masked:
                    a(x)
                issued += 2
        if not half:
            mine = loads[:nl[ph]]
            loads = loads[nl[ph]:]
            issued += len(mine)
        eawait = f"s_waitcnt vmcnt({issued-len(mine)-2}) lgkmcnt(3)"
        rcps = [f"v_rcp_f32 v{Z+i}, v{Z+i}" for i in range(16)]
        if f16:
            for r in range(4):
                for t in (0, 2):
                    z, g = Z + 4 * r + t, G(slot, s, r, hh, t)
                    a(f"v_pk_fma_f32 v[{z}:{z+1}], v[{z}:{z+1}], v[{g}:{g+1}], 1.0 op_sel_hi:[1,1,0]")
            if ph == 3:
                a(eawait)
            weave(a, rcps, gate + mine, start=0, step=1)
            if f16 == 1:
                for t in range(4):
                    for j in range(2):
                        m, r = G(slot, 0, t, hh) + 2 * s + j, 2 * j + 1
                        a(f"v_fma_mixhi_f16 v{m}, v{Z+4*r+t}, v{G(slot,s,r,hh,t)}, 0 op_sel_hi:[0,1,0]")
                for t, j in ((0, 0), (1, 0), (0, 1), (1, 1), (2, 0), (2, 1), (3, 0), (3, 1)):
                    m, r = G(slot, 0, t, hh) + 2 * s + j, 2 * j
                    a(f"v_fma_mixlo_f16 v{m}, v{Z+4*r+t}, v{G(slot,s,r,hh,t)}, 0 op_sel_hi:[0,1,0]")
            else:
                for r in range(4):
                    for t in range(4):
                        a(f"v_fma_mix_f32 v{Z+4*r+t}, v{Z+4*r+t}, v{G(slot,s,r,hh,t)}, 0 op_sel_hi:[0,1,0]")
        else:
            if ph == 3:
                a(eawait)
            exps = [f"v_exp_f32 v{Z+i}, v{Z+i}" for i in range(16)]
            h2 = len(mine) // 2
            weave(a, exps, gate + mine[:h2], start=0, step=2 if mine else 1)
            if pk:
                for i in range(0, 16, 2):
                    a(f"v_pk_add_f32 v[{Z+i}:{Z+i+1}], v[{Z+i}:{Z+i+1}], 1.0 op_sel_hi:[1,0]")
            else:
                for i in range(16):
                    a(f"v_add_f32 v{Z+i}, 1.0, v{Z+i}")
            weave(a, rcps, mine[h2:], start=1, step=3)
            for r in range(4):
                if pk:
                    for t in (0, 2):
                        z, g = Z + 4 * r + t, G(slot, s, r, hh, t)
                        a(f"v_pk_mul_f32 v[{z}:{z+1}], v[{z}:{z+1}], v[{g}:{g+1}]")
                else:
                    for t in range(4):
                        a(f"v_mul_f32 v{Z+4*r+t}, v{Z+4*r+t}, v{G(slot,s,r,hh,t)}")
        if ph == 2:
            idx_reads(a, slot, toff + 2)
        if f16 != 1:
            for t in range(4):
                m = G(slot, 0, t, hh) + 2 * s
                a(f"v_cvt_pk_bf16_f32 v{m}, v{Z+t}, v{Z+4+t}\nv_cvt_pk_bf16_f32 v{m+1}, v{Z+8+t}, v{Z+12+t}")
        fx = (lambda m: m.replace("_bf16", "_f16")) if f16 == 1 else (lambda m: m)
        mfs = mf16h if half else mf16
        seg = [fx(mfs(ACC + 16 * hh + 4 * t, SA, G(slot, 0, t, hh), q4(ACC + 16 * hh + 4 * t))) for t in range(4)]
        if half and ph == 0:
            a("s_waitcnt lgkmcnt(0)")
            seg_pending = seg
        elif ph == 2:
            a("s_waitcnt lgkmcnt(3)")
            seg_pending = seg
        elif ph == 3 or half:
            a("s_nop 1")
            for m in seg:
                a(m)


def gen_k2(opt):
    a = Asm()
    npf = opt.get("npf", 0)
    a.label("k2_kernel")
    a("""s_and_b32 s3, s2, 7
    s_lshl_b32 s3, s3, 5
    s_lshr_b32 s57, s2, 3
    s_add_u32 s32, s57, s3
    s_cmp_ge_u32 s2, 256
    s_cbranch_scc1 K2_END""")
    stamp(a, opt, 0, 1)
    a(f"""s_load_dwordx4 s[4:7], s[0:1], 0
    s_load_dwordx2 s[8:9], s[0:1], 56
    s_load_dwordx2 s[10:11], s[0:1], 72
    s_lshl_b32 s57, s57, 16
    s_cmp_ge_u32 s32, 250
    s_cbranch_scc1 K2_IDLE
    v_mov_b32 v{VTID}, v0
    v_lshrrev_b32 v1, 6, v0
    v_and_b32 v2, 63, v0
    v_readfirstlane_b32 s33, v1
    v_and_b32 v3, 15, v2
    v_lshrrev_b32 v4, 4, v2
    v_lshlrev_b32 v{VLANE}, 4, v3
    s_mov_b32 s50, 0
    s_mov_b32 s51, -1
    v_lshlrev_b32 v{VGC}, 4, v4
    v_mov_b32 v{VGM}, -1
    s_mov_b64 exec, s[50:51]
    v_add_u32 v{VGC}, {TG-32}, v{VGC}
    v_mov_b32 v{VGM}, 0x1e0
    s_mov_b64 exec, -1
    v_and_b32 v5, 3, v2
    v_lshlrev_b32 v5, 3, v5
    v_add_u32 v{VSC}, {TS}, v5
    v_lshlrev_b32 v6, 10, v0
    s_lshl_b32 s34, s32, 2
    s_add_u32 s34, s34, {OFF}
    v_mov_b32 v{VCUR}, 0
    v_mov_b32 v{VEND}, 0
    s_mul_i32 s36, s32, 25600
    s_movk_i32 s54, 0x1e0
    s_mov_b32 s55, 0xfffe00""")
    a(f"""v_bfe_u32 v14, v0, 3, 4
    v_and_b32 v11, 7, v0
    s_movk_i32 s37, 128
    v_cmp_gt_u32 vcc, s37, v0
    v_mov_b32 v17, 0x3f80
    v_mov_b32 v18, {0x3c00 if opt.get("f16") == 1 else 0x3f80}
    v_cndmask_b32 v17, v18, v17, vcc
    v_and_b32 v16, 1, v14
    v_lshlrev_b32 v16, 4, v16
    v_lshlrev_b32 v17, v16, v17
    v_lshrrev_b32 v14, 1, v14
    v_cmp_eq_u32 vcc, v14, v11
    v_lshlrev_b32 v15, 2, v0
    s_cmp_ge_u32 s33, 4
    v_xor_b32 v15, 1024, v15
    v_cndmask_b32 v17, 0, v17, vcc
    s_cbranch_scc0 K2_TAB
    v_mov_b32 v17, 0""")
    a.label("K2_TAB")
    a(f"""ds_write_b32 v15, v17
    s_movk_i32 s35, 500
    v_cmp_gt_u32 vcc, s35, v0
    s_waitcnt lgkmcnt(0)""")
    srd(a, 20, 10, 11, WS_USED)
    a(f"""s_mov_b64 exec, vcc
    buffer_load_dword v{VEND}, v6, s[20:23], s34 offen
    s_mov_b64 exec, -1""")
    srd(a, 24, 4, 5, 26624, add="s36")
    a("s_sub_u32 s37, 6400000, s36\ns_min_u32 s26, s26, s37")
    a(f"""s_lshl_b32 s37, s33, 2
    v_add_u32 v8, s37, v4
    v_xor_b32 v9, v8, v2
    v_and_b32 v9, 15, v9
    v_lshlrev_b32 v9, 4, v9
    v_lshl_add_u32 v9, v8, 8, v9
    v_mov_b32 v{VT0}, v9
    s_barrier""")
    srd(a, 12, 10, 11, TAB_SZ)
    srd(a, 16, 10, 11, TAB_SZ, add=EAS)
    srd(a, 28, 8, 9, 25600, add="s36")
    a("s_mov_b32 s40, 0\ns_movk_i32 s41, 512\ns_mov_b32 s42, 1\ns_mov_b32 s58, 1")
    a(f"""v_mul_u32_u24 v10, 3200, v0
    s_waitcnt vmcnt(0)
    v_add_u32_sdwa v{VCUR}, v{VEND}, v10 dst_sel:DWORD dst_unused:UNUSED_PAD src0_sel:WORD_0 src1_sel:DWORD
    v_add_u32_sdwa v{VEND}, v{VEND}, v10 dst_sel:DWORD dst_unused:UNUSED_PAD src0_sel:WORD_1 src1_sel:DWORD""")
    stamp(a, opt, 1, 1)

    R, RK, BN = 64, 80, 96
    VREM, VFOUR, VCB = 112, 113, 114
    a.label("K2_ROUND")
    a(f"""v_subrev_u32 v5, s40, v{VTID}
    v_cmp_gt_u32 vcc, s41, v5
    v_sub_u32 v{VREM}, v{VEND}, v{VCUR}
    s_mov_b32 s37, {REC}
    v_cndmask_b32 v{VREM}, 0, v{VREM}, vcc
    v_mov_b32 v6, 0x7fffff00""")
    for m in range(4):
        a(f"""v_cmp_lt_u32 vcc, {16*m}, v{VREM}
        s_nop 1
        v_cndmask_b32 v7, v6, v{VCUR}, vcc
        buffer_load_dwordx4 {q4(R+4*m)}, v7, s[20:23], s37 offen offset:{16*m}""")
    a("s_cmp_eq_u32 s58, 0\ns_cbranch_scc1 K2_NOGEMM")
    a(f"""s_lshl_b32 s37, s33, 10
    s_add_u32 s37, s37, {XR}
    v_and_b32 v7, 63, v{VTID}
    v_lshlrev_b32 v7, 4, v7""")
    for st in range(4):
        if st < 3:
            a(f"s_add_u32 m0, s37, {st*8192}")
        else:
            a(f"s_add_u32 s37, s37, {3*8192}\ns_cmp_lt_u32 s33, 2\ns_cselect_b32 m0, s37, {JUNK2}")
        a(f"v_add_u32 v{VT0}, 8192, v{VT0}" if st else "s_nop 0")
        a(f"buffer_load_dwordx4 v{VT0}, s[24:27], 0 offen lds")
    a(f"""s_and_b32 s37, s33, 3
    s_lshl_b32 s37, s37, 10
    s_add_u32 m0, s37, {CFL}
    s_add_u32 s37, s37, {CF}
    buffer_load_dwordx4 v7, s[20:23], s37 offen lds
    s_lshl_b32 s37, s33, 12
    s_add_u32 s38, s37, {WF}
    s_add_u32 s39, s38, 32768""")
    WB = ACC
    for mat in range(2):
        for s in range(4):
            a(f"buffer_load_dwordx4 {q4(WB+16*mat+4*s)}, v7, s[20:23], s{38+mat} offen offset:{s*1024}")
    if npf:
        a(f"v_lshl_add_u32 v7, v{VTID}, 7, s57")
    for k in range(npf):
        if k:
            a("v_add_u32 v7, 0x200000, v7")
        a(f"buffer_load_dword v{120+k}, v7, s[12:15], 0 offen")
    a(f"s_mov_b32 s58, 0\ns_waitcnt vmcnt({13+npf})\ns_branch K2_COUNT")
    a.label("K2_NOGEMM")
    a("s_waitcnt vmcnt(0)")
    a.label("K2_COUNT")
    stamp(a, opt, 5, 1)
    a(f"""v_mov_b32 v{VFOUR}, 4
    v_mul_u32_u24 v{VCB}, 25600, v{VTID}
    v_and_b32 v2, 63, v{VTID}
    v_mov_b32 v4, 0
    s_movk_i32 s37, {opt.get('binmask',0xfc)}""")
    for j in range(16):
        a(f"""v_cmpx_lt_u32 vcc, {4*j}, v{VREM}
        v_and_b32_sdwa v{BN+j}, s37, v{R+j} dst_sel:DWORD dst_unused:UNUSED_PAD src0_sel:DWORD src1_sel:BYTE_3""")
        if j >= 4:
            a("s_cbranch_execz K2_CDONE")
        a(f"ds_add_rtn_u32 v{RK+j}, v{BN+j}, v{VFOUR} offset:{HIST}")
    a(f"""v_cmp_lt_u32 vcc, 64, v{VREM}
    s_and_b64 exec, exec, vcc
    s_cbranch_scc0 K2_CDONE
    ds_write_b32 v4, v{VFOUR} offset:{FLAG}""")
    a.label("K2_CDONE")
    a(f"""s_mov_b64 exec, -1
    v_and_b32 v5, 7, v2
    v_lshlrev_b32 v6, 5, v5
    s_waitcnt lgkmcnt(0)
    s_barrier""")
    stamp(a, opt, 6, 1)
    a(f"""ds_read_b128 v[8:11], v6 offset:{HIST}
    ds_read_b128 v[12:15], v6 offset:{HIST+16}
    ds_read_b32 v7, v4 offset:{FLAG}
    v_mul_u32_u24 v16, {GSTR}, v5
    s_waitcnt lgkmcnt(0)
    v_readfirstlane_b32 s48, v7""")
    for k in range(7):
        a(f"v_add_u32 v{17+k}, v{16+k}, v{8+k}")
    a(f"""v_add_u32 v24, v23, v15
    ds_write_b128 v6, v[16:19] offset:{BASE}
    ds_write_b128 v6, v[20:23] offset:{BASE+16}
    v_sub_u32 v24, v24, v16
    s_movk_i32 s37, {CAP4}
    v_cmp_lt_u32 vcc, s37, v24
    s_cbranch_vccz K2_FITS
    s_movk_i32 s41, 16
    s_branch K2_AGAIN""")
    a.label("K2_FITS")
    a(f"v_cmp_lt_u32 vcc, 40, v{VREM}\ns_waitcnt lgkmcnt(0)")
    for j in range(10):
        a(f"ds_read_b32 v{BN+j}, v{BN+j} offset:{BASE}")
    a("s_cbranch_vccz K2_BDONE")
    for j in range(10, 16):
        a(f"ds_read_b32 v{BN+j}, v{BN+j} offset:{BASE}")
    a.label("K2_BDONE")
    a("s_cmp_eq_u32 s42, 0\ns_cbranch_scc1 K2_HAVEG")
    a("v_lshl_add_u32 v25, v24, 3, v5\ns_nop 0\ns_sub_u32 s37, 11, s33")
    for k in range(1, 8):
        a(f"v_subrev_u32_dpp v{27+k}, v25, v25 row_ror:{k} row_mask:0xf bank_mask:0xf")
    for k in range(1, 8):
        a(f"v_lshrrev_b32 v{27+k}, 31, v{27+k}")
    a("v_add3_u32 v26, v28, v29, v30\nv_add3_u32 v26, v26, v31, v32\nv_add3_u32 v26, v26, v33, v34")
    a("""s_cmp_lt_u32 s33, 4
    s_cselect_b32 s37, s33, s37
    v_cmp_eq_u32 vcc, s37, v26
    s_nop 0
    s_ff1_i32_b64 s43, vcc""")
    a.label("K2_HAVEG")
    a("s_nop 3\nv_readlane_b32 s44, v24, s43\ns_waitcnt lgkmcnt(0)")
    for j in range(16):
        a(f"""v_cmpx_lt_u32 vcc, {4*j}, v{VREM}
        v_add_u32 v{BN+j}, v{BN+j}, v{RK+j}""")
        if j >= 4:
            a("s_cbranch_execz K2_SDONE")
        a(f"""v_and_b32 v9, 0x3ff, v{R+j}
        v_lshrrev_b32 v8, 5, v{R+j}
        v_lshl_add_u32 v9, v9, 5, v{VCB}
        ds_write2st64_b32 v{BN+j}, v8, v9 offset0:{LSD//256} offset1:{LEA//256}""")
    a.label("K2_SDONE")
    a(f"""s_mov_b64 exec, -1
    v_min_u32 v8, 64, v{VREM}
    v_add_u32 v{VCUR}, v{VCUR}, v8
    s_mul_i32 s49, s43, {GSTR}
    s_add_u32 s45, s44, 127
    s_lshr_b32 s45, s45, 7
    s_sub_u32 s59, s44, 4
    s_bfe_u32 s59, s59, 0x10006
    s_add_u32 s37, s49, s44
    v_lshl_add_u32 v8, v2, 2, s37
    v_mov_b32 v9, 0x1e0
    v_lshrrev_b32 v10, 4, v2
    v_and_b32 v11, 15, v2
    s_add_u32 s37, s49, {LSD}
    v_lshl_add_u32 v{PSRC}, v10, 4, s37
    v_and_b32 v{PD}, 0xfc, v2
    v_add_u32 v{PD}, s37, v{PD}
    s_add_u32 s37, s49, {LEA}
    v_lshl_add_u32 v{PG}, v11, 2, s37
    s_mov_b64 exec, s[50:51]
    v_subrev_u32 v{PG}, {LEA-LSD}, v{PG}
    s_mov_b64 exec, -1
    s_lshl_b32 s37, s43, 13
    s_add_u32 s37, s37, {XUL}
    v_lshl_add_u32 v12, v2, 4, s37
    s_lshl_b32 s37, s43, 12
    s_add_u32 s37, s37, {XAL-32-CFL}
    v_lshlrev_b32 v13, 5, v11
    v_lshl_add_u32 v13, v10, 4, v13
    v_add_u32 v13, {CFL}, v13
    s_mov_b64 exec, s[50:51]
    v_add_u32 v13, s37, v13
    s_mov_b64 exec, -1
    s_sub_u32 s60, s45, 1
    s_cmp_eq_u32 s59, 0
    s_cselect_b32 s60, s60, -1
    v_mov_b32 v116, v12
    v_mov_b32 v117, v13
    s_waitcnt vmcnt({npf}) lgkmcnt(0)
    s_barrier""")
    stamp(a, opt, 7, 1)
    if opt.get("prio"):
        a("s_setprio 3")
    if opt.get("prio") == 2:
        a(f"""s_and_b32 s37, s33, 3
        s_lshl_b32 s37, s37, 2
        s_bitcmp1_b32 s33, 2
        s_cselect_b32 s38, 32, 0
        s_add_u32 s37, s37, s38
        v_mov_b32 v{VT0}, s37""")
    a(f"""s_mov_b32 exec_hi, 0
    ds_write_b32 v8, v9 offset:{LSD}
    ds_write_b32 v8, v4 offset:{LEA}
    s_mov_b32 exec_hi, -1""")
    a("s_cmp_lt_u32 0, s45")
    enable_srds(a, opt)
    idx_reads(a, 0, 0)
    idx_reads(a, 1, 1)
    a("s_waitcnt lgkmcnt(3)")
    for part in issue_parts(0):
        for x in part:
            a(x)
    stamp(a, opt, 2, 1)
    a("s_cmp_eq_u32 s42, 0\ns_cbranch_scc1 K2_NOINIT")
    a(f"""v_and_b32 v114, 63, v{VTID}
    v_and_b32 v118, 15, v114
    v_lshrrev_b32 v119, 4, v114
    s_lshl_b32 s37, s33, 10
    s_add_u32 s37, s37, {XUL}
    v_lshl_add_u32 v114, v114, 4, s37
    s_lshl_b32 s37, s33, 9
    s_add_u32 s37, s37, {XAL}
    v_lshl_add_u32 v115, v118, 5, s37
    v_lshl_add_u32 v115, v119, 3, v115
    s_mov_b32 s38, {NEG_LOG2E}""")
    ABUF = (P, Z, 64)

    def a_reads(g):
        buf = ABUF[g % 3]
        st = (25 * g + 1) >> 1
        a(f"""v_add_u32 v100, {st}, v118
        v_xor_b32 v101, v119, v100
        v_and_b32 v101, 15, v101
        v_lshlrev_b32 v101, 4, v101
        v_lshl_add_u32 v100, v100, 8, v101""")
        for s in range(4):
            if s:
                a(f"v_xor_b32 v101, {s*64}, v100")
            a(f"ds_read_b128 {q4(buf+4*s)}, v{101 if s else 100} offset:{XR}")

    def post(g):
        d = BOP + 8 * (g & 3)
        for r in range(4):
            a(f"v_mul_f32 v{d+r}, s38, v{d+r}")
        a(f"v_cvt_pk_bf16_f32 v{d}, v{d}, v{d+1}\nv_cvt_pk_bf16_f32 v{d+1}, v{d+2}, v{d+3}")
        a(f"ds_write_b64 v115, v[{d}:{d+1}] offset:{g*4096}")
        a(f"ds_write_b128 v114, {q4(d+4)} offset:{g*8192}")

    a_reads(0)
    a_reads(1)
    for g in range(8):
        if g < 6:
            a_reads(g + 2)
        younger = (8 if g < 6 else 4 * (7 - g)) + 2 * min(2, max(0, g - 1))
        a(f"s_waitcnt lgkmcnt({younger})")
        buf = ABUF[g % 3]
        d = BOP + 8 * (g & 3)
        for s in range(4):
            a(mf16(d, buf + 4 * s, WB + 4 * s, "0" if s == 0 else q4(d)))
            a(mf16(d + 4, buf + 4 * s, WB + 16 + 4 * s, "0" if s == 0 else q4(d + 4)))
        if g:
            post(g - 1)
    a("s_nop 7")
    post(7)
    a(f"s_mul_i32 s52, s43, 25\ns_add_u32 s52, s52, 1\ns_lshr_b32 s52, s52, 1")
    stamp(a, opt, 3, 1)
    a("s_waitcnt lgkmcnt(0)\ns_barrier")
    stamp(a, opt, 4, 1)
    for b in range(8):
        a(f"ds_read_b128 {q4(BOP+4*b)}, v117 offset:{b*512}")
    for b in range(8):
        a(f"ds_read_b128 {q4(ACC+4*b)}, v116 offset:{b*1024}")
    a.label("K2_NOINIT")
    if opt.get("prio") == 2:
        a("s_setprio 1")
    stamp(a, opt, 8, 1)
    a("s_mov_b32 s46, 0\ns_cmp_eq_u32 s45, 0\ns_cbranch_scc1 K2_TDONE")
    a("s_waitcnt vmcnt(16) lgkmcnt(0)")
    for t in range(4):
        a(mf16(P + 4 * t, GA, BOP + 4 * t, "0"))
    a("s_nop 7")
    a(".p2align 6")
    a.label("K2_LOOP")
    if opt.get("prio") == 1:
        a("""s_cmp_ge_u32 s46, 2
        s_cbranch_scc0 K2_PR
        s_setprio 2
        s_cmp_ge_u32 s46, 4
        s_cbranch_scc0 K2_PR
        s_setprio 1
        s_cmp_ge_u32 s46, 6
        s_cbranch_scc0 K2_PR
        s_setprio 0""")
        a.label("K2_PR")
    a("s_cmp_eq_u32 s46, s60\ns_cbranch_scc1 K2_HALF0")
    tile(a, opt, 0, 0)
    a("s_cmp_ge_u32 s46, s45\ns_cbranch_scc1 K2_TDONE")
    a("s_cmp_eq_u32 s46, s60\ns_cbranch_scc1 K2_HALF1")
    tile(a, opt, 1, 1)
    a(f"""v_add_u32 v{PSRC}, 256, v{PSRC}
    v_add_u32 v{PG}, 256, v{PG}
    v_add_u32 v{PD}, 256, v{PD}
    s_cmp_lt_u32 s46, s45
    s_cbranch_scc1 K2_LOOP
    s_branch K2_TDONE""")
    a.label("K2_HALF0")
    tile(a, opt, 0, 0, half=True)
    a("s_branch K2_TDONE")
    a.label("K2_HALF1")
    tile(a, opt, 1, 1, half=True)
    a.label("K2_TDONE")
    stamp(a, opt, 9, 1)
    a("""s_waitcnt vmcnt(0) lgkmcnt(0)
    s_mov_b32 s42, 0
    s_cmp_lg_u32 s48, 0
    s_cbranch_scc1 K2_AGAIN
    s_add_u32 s40, s40, s41
    s_cmp_ge_u32 s40, 500
    s_cbranch_scc1 K2_EPI""")
    a.label("K2_AGAIN")
    a(f"""s_waitcnt lgkmcnt(0)
    s_barrier
    v_and_b32 v2, 63, v{VTID}
    v_lshlrev_b32 v3, 2, v2
    v_mov_b32 v4, 0
    ds_write_b32 v3, v4 offset:{HIST}
    ds_write_b32 v4, v4 offset:{FLAG}
    s_waitcnt lgkmcnt(0)
    s_barrier
    s_branch K2_ROUND""")
    a.label("K2_EPI")
    a(f"""s_mul_i32 s53, s43, 25
    s_add_u32 s53, s53, 26
    s_lshr_b32 s53, s53, 1
    s_sub_u32 s53, s53, s52
    v_and_b32 v2, 63, v{VTID}
    v_lshrrev_b32 v3, 4, v2
    v_lshlrev_b32 v3, 2, v3
    v_and_b32 v4, 15, v2
    v_add_u32 v5, s52, v3
    v_lshlrev_b32 v5, 8, v5
    v_lshl_add_u32 v5, v4, 3, v5
    s_mov_b32 s36, {NEG_LOG2E}
    s_mov_b32 s37, {NEG_LOG2E}
    v_mov_b32 v6, 0x7ffffff0""")
    for r in range(4):
        a(f"""v_add_u32 v7, {r}, v3
        v_cmp_gt_u32 vcc, s53, v7
        s_nop 1
        v_cndmask_b32 v{8+r}, v6, v5, vcc""")
    for hh in range(2):
        lo = 16 * hh
        for i in range(lo, lo + 16, 2):
            a(f"v_pk_mul_f32 v[{16+i}:{17+i}], v[{ACC+i}:{ACC+i+1}], s[36:37]")
        for i in range(lo, lo + 16):
            a(f"v_exp_f32 v{16+i}, v{16+i}")
        for i in range(lo, lo + 16, 2):
            a(f"v_pk_add_f32 v[{16+i}:{17+i}], v[{16+i}:{17+i}], 1.0 op_sel_hi:[1,0]")
        for i in range(lo, lo + 16):
            a(f"v_rcp_f32 v{16+i}, v{16+i}")
        for i in range(lo, lo + 16, 2):
            a(f"v_pk_mul_f32 v[{16+i}:{17+i}], v[{16+i}:{17+i}], v[{ACC+i}:{ACC+i+1}]")
        for r in range(4):
            o = 48 + (r * 2 + hh) * 2
            y = lambda t: 16 + (4 * hh + t) * 4 + r
            a(f"v_cvt_pk_bf16_f32 v{o}, v{y(0)}, v{y(1)}\nv_cvt_pk_bf16_f32 v{o+1}, v{y(2)}, v{y(3)}")
            a(f"buffer_store_dwordx2 v[{o}:{o+1}], v{8+r}, s[28:31], 0 offen offset:{r*256+hh*128}")
    stamp(a, opt, 10, 1)
    if opt.get("stamp"):
        stamp_flush(a, opt, 11, 1, 10, 11, 33)
    a("s_endpgm")
    a.label("K2_IDLE")
    a("v_lshl_add_u32 v7, v0, 7, s57\ns_waitcnt lgkmcnt(0)")
    srd(a, 12, 10, 11, TAB_SZ)
    for k in range(npf):
        if k:
            a("v_add_u32 v7, 0x200000, v7")
        a(f"buffer_load_dword v{8+k}, v7, s[12:15], 0 offen")
    a("s_waitcnt vmcnt(0)")
    a.label("K2_END")
    a("s_endpgm")
    return a, K2_LDS


HEADER = """; Edge-gated message passing layer, two launches.
;       (x@V as rounded high half | -log2e * x@B as f16 low half) per node; weight fragments.
"""


def kd(name, nv, ns):
    return f""".p2align 6
.amdhsa_kernel {name}
  .amdhsa_next_free_vgpr {nv}
  .amdhsa_next_free_sgpr {ns}
  .amdhsa_accum_offset {(nv+3)//4*4}
  .amdhsa_group_segment_fixed_size 0
  .amdhsa_kernarg_size 80
  .amdhsa_user_sgpr_count 2
  .amdhsa_user_sgpr_kernarg_segment_ptr 1
  .amdhsa_system_sgpr_workgroup_id_x 1
.end_amdhsa_kernel
"""


def build(opt):
    k1, l1 = gen_k1(opt)
    k2, l2 = gen_k2(opt)
    flags = {0: "", 1: " sc1", 2: " sc0 sc1", 3: " nt", 4: " sc1 nt", 5: " sc0 sc1 nt"}
    for k, key in ((k1, "st1"), (k2, "st2")):
        k.lines = [ln + flags[opt.get(key, 0)] if ln.startswith("buffer_store") else ln for ln in k.lines]
    for nm, k in (("k1", k1), ("k2", k2)):
        for pr in lint(k.lines):
            print(f"LINT {nm}: need {pr[2]} have {pr[3]}: {pr[4]}  ->  {pr[5]}", file=sys.stderr)
    s = HEADER
    s += f"; @launch kernel=k1_kernel grid=(256,1,1) block=(512,1,1) lds={l1}\n"
    s += f"; @launch kernel=k2_kernel grid=(256,1,1) block=(512,1,1) lds={l2}\n"
    s += '.amdgcn_target "amdgcn-amd-amdhsa--gfx950"\n.text\n'
    for nm, k in (("k1_kernel", k1), ("k2_kernel", k2)):
        s += f".globl {nm}\n.p2align 8\n.type {nm},@function\n" + k.text()
    s += '.section .rodata,"a"\n' + kd("k1_kernel", 224, 102) + kd("k2_kernel", 256, 102)
    return s


if __name__ == "__main__":
    opt = {}
    out = f"cdna_kernels/{NAME}.s"
    for arg in sys.argv[1:]:
        if arg.startswith("-o"):
            out = arg[2:]
        else:
            k, _, v = arg.partition("=")
            opt[k] = int(v) if v else 1
    open(out, "w").write(build(opt))
    print("wrote", out)
```

```python
import sys
from asmlib import Asm, lint

NAME = "standalone__edge_featured_mpnn_egc__graph"
NEG_LOG2E = 0xBFB8AA3B
TAB, TAB_SZ = 0, 12800000
REC = 0x0D00000
OFF = 0x0F00000
WF = 0x0F80000
CF = 0x0F90000
STAMP = 0x2000000
WS_USED = 0x1000000
EAS = 0x1000000


def srd(a, d, lo, hi, size, add=None):
    if add is None:
        a(f"s_mov_b32 s{d}, s{lo}\ns_mov_b32 s{d+1}, s{hi}")
    else:
        a(f"s_add_u32 s{d}, s{lo}, {add}\ns_addc_u32 s{d+1}, s{hi}, 0")
    a(f"s_mov_b32 s{d+2}, {size}\ns_mov_b32 s{d+3}, 0x20000")


def code_touch(a, tag, target, lines64, sreg, vlane, vtmp, vdst):
    a(f"s_getpc_b64 s[{sreg}:{sreg+1}]")
    a.label(tag)
    if target.endswith("_kernel") and not target.startswith("k2"):
        a(f"s_sub_u32 s{sreg}, s{sreg}, {tag}-{target}\ns_subb_u32 s{sreg+1}, s{sreg+1}, 0\nv_lshlrev_b32 v{vtmp}, 7, v{vlane}")
    else:
        a(f"s_add_u32 s{sreg}, s{sreg}, {target}-{tag}\ns_addc_u32 s{sreg+1}, s{sreg+1}, 0\nv_lshlrev_b32 v{vtmp}, 7, v{vlane}")
    for k in range(lines64):
        if k:
            a(f"v_add_u32 v{vtmp}, 8192, v{vtmp}")
        a(f"global_load_dword v{vdst}, v{vtmp}, s[{sreg}:{sreg+1}]")


def dbg(a, opt, word, invert, kern, drain=False):
    if not opt.get("dbg"):
        return
    if drain:
        a("s_waitcnt vmcnt(0)")
    a("s_load_dwordx2 s[92:93], s[0:1], 64\ns_memrealtime s[90:91]\ns_waitcnt lgkmcnt(0)")
    if kern:
        a("s_sub_u32 s92, s92, 512\ns_subb_u32 s93, s93, 0")
    if invert:
        a("s_not_b32 s90, s90")
    v = 220 if kern == 0 else 126
    a(f"s_mov_b64 s[88:89], exec\ns_mov_b64 exec, 1\nv_mov_b32 v{v}, {word*4}\nv_mov_b32 v{v+1}, s90")
    a(f"global_atomic_umax v{v}, v{v+1}, s[92:93]\ns_mov_b64 exec, s[88:89]")


def stamp(a, opt, idx, kern):
    if opt.get("stamp"):
        a(f"s_memrealtime s[{70+2*idx}:{71+2*idx}]")


def stamp_flush(a, opt, n, kern, ws_lo, ws_hi, swave):
    if not opt.get("stamp"):
        return
    a("s_mov_b64 exec, -1")
    a("s_waitcnt lgkmcnt(0) vmcnt(0)")
    srd(a, 96, ws_lo, ws_hi, 0x100000, add=STAMP + kern * 0x40000)
    a(f"s_lshl_b32 s68, s2, 3\ns_add_u32 s68, s68, s{swave}\ns_lshl_b32 s68, s68, 6")
    a("v_mov_b32 v1, 0")
    for i in range(n):
        a(f"v_mov_b32 v0, s{70+2*i}")
        a(f"buffer_store_dword v0, v1, s[96:99], s68 offen offset:{4*i}")
    if kern == 1:
        a("s_getreg_b32 s69, hwreg(HW_REG_HW_ID)")
        a(f"v_and_b32 v2, 63, v{VTID}\nv_lshlrev_b32 v2, 2, v2\ns_lshl_b32 s94, s68, 2\ns_add_u32 s94, s94, 0x40000")
        a(f"buffer_store_dword v{VEND}, v2, s[96:99], s94 offen")
        for j, sr in enumerate((69, 45, 44, 43)):
            a(f"v_mov_b32 v0, s{sr}")
            a(f"buffer_store_dword v0, v1, s[96:99], s68 offen offset:{4*(12+j)}")
    a("s_waitcnt vmcnt(0)")


def gen_k1(opt):
    a = Asm()
    HIST, HIST2, BASE, BASE2, STAGE, INV, JUNK, XL, WL, EAL = 0, 2048, 2560, 4608, 5120, 11520, 17920, 19456, 45056, 110592
    a.label("k1_kernel")
    a("s_cmp_ge_u32 s2, 256\ns_cbranch_scc1 K1_END")
    stamp(a, opt, 0, 0)
    dbg(a, opt, 0, True, 0)
    a("""s_load_dwordx4 s[4:7], s[0:1], 0
    s_load_dwordx4 s[8:11], s[0:1], 16
    s_load_dwordx4 s[12:15], s[0:1], 32
    s_load_dwordx2 s[16:17], s[0:1], 48
    s_load_dwordx2 s[18:19], s[0:1], 72
    v_lshrrev_b32 v1, 6, v0
    v_and_b32 v2, 63, v0
    v_readfirstlane_b32 s20, v1""")
    if opt.get("ct", 1) & 1:
        a("s_cmp_ge_u32 s20, 3\ns_cbranch_scc1 K1_NOCT")
        code_touch(a, "K1_CT0", "K1_CT0", 1, 22, 0, 222, 223)
        a.label("K1_NOCT")
    a("""s_cmp_ge_u32 s2, 250
    s_cbranch_scc1 K1_PREP""")
    a(f"""v_and_b32 v3, 255, v0
    v_lshrrev_b32 v7, 8, v0
    v_mul_u32_u24 v4, 3200, v7
    v_lshl_add_u32 v4, v3, 4, v4
    v_lshlrev_b32 v5, 10, v7
    v_lshlrev_b32 v37, 8, v7
    v_mov_b32 v6, 4
    v_lshlrev_b32 v8, 2, v0
    v_mov_b32 v9, 0
    ds_write_b32 v8, v9
    ds_write_b32 v8, v9 offset:512
    s_movk_i32 s21, 200
    v_cmp_gt_u32 s[56:57], s21, v3
    s_mul_i32 s22, s2, 6400
    s_mul_i32 s23, s2, 25600
    s_waitcnt lgkmcnt(0)""")
    srd(a, 24, 10, 11, 6400, add="s22")
    srd(a, 28, 8, 9, 6400, add="s22")
    a("s_mov_b64 exec, s[56:57]")
    nt = lambda bit: " nt" if opt.get("nt", 0) & bit else ""
    a("buffer_load_dwordx4 v[10:13], v4, s[24:27], 0 offen" + nt(1))
    a("buffer_load_dwordx4 v[14:17], v4, s[28:31], 0 offen" + nt(1))
    a("s_mov_b64 exec, -1")
    if opt.get("pt"):
        a("s_cmp_lg_u32 s20, 7\ns_cbranch_scc1 K1_NOPT\ns_load_dwordx2 s[60:61], s[0:1], 56")
        srd(a, 32, 18, 19, 0x2000000)
        a(f"v_lshlrev_b32 v222, {opt['pt']}, v2\nbuffer_load_dword v223, v222, s[32:35], 0 offen\ns_waitcnt lgkmcnt(0)")
        srd(a, 32, 60, 61, 6400000)
        a("buffer_load_dword v223, v222, s[32:35], 0 offen")
        srd(a, 32, 6, 7, 12800000)
        a("buffer_load_dword v223, v222, s[32:35], 0 offen")
        a.label("K1_NOPT")
    srd(a, 32, 4, 5, 25600, add="s23")
    srd(a, 36, 16, 17, 32768, add=32768)
    srd(a, 40, 14, 15, 32768)
    a("s_barrier")
    a(f"""v_lshrrev_b32 v18, 4, v2
    s_lshl_b32 s58, s20, 2
    v_add_u32 v19, s58, v18
    v_xor_b32 v20, v19, v2
    v_and_b32 v20, 15, v20
    v_lshlrev_b32 v20, 4, v20
    v_lshl_add_u32 v20, v19, 8, v20
    s_lshl_b32 s59, s20, 10
    s_add_u32 s60, s59, {XL}""")
    for st in range(4):
        if st < 3:
            a(f"s_add_u32 m0, s60, {st*8192}")
        else:
            a(f"s_add_u32 s60, s60, {3*8192}\ns_cmp_eq_u32 s20, 0\ns_cselect_b32 m0, s60, {JUNK}")
        if st:
            a("v_add_u32 v20, 8192, v20")
        else:
            a("s_nop 0")
        a("buffer_load_dwordx4 v20, s[32:35], 0 offen" + nt(4) + " lds")
    a(f"""v_lshlrev_b32 v21, 2, v18
    v_xor_b32 v21, v21, v2
    v_and_b32 v21, 15, v21
    v_lshlrev_b32 v21, 4, v21
    v_lshl_add_u32 v21, v18, 8, v21
    s_lshl_b32 s59, s20, 12
    s_add_u32 s60, s59, {WL}""")
    for mat, s in ((0, 36), (1, 40)):
        a(f"s_add_u32 m0, s60, {mat*32768}\ns_nop 0")
        for k in range(4):
            a(f"buffer_load_dwordx4 v21, s[{s}:{s+3}], s59 offen offset:{k*1024} lds")
    a("s_mul_i32 s23, s2, 51200")

    def ea_dma():
        srd(a, 32, 6, 7, 51200, add="s62")
        a(f"""v_lshlrev_b32 v21, 4, v0
        s_lshl_b32 s59, s20, 10
        s_add_u32 s60, s59, {EAL}""")
        for st in range(7):
            if st < 6:
                a(f"s_add_u32 m0, s60, {st*8192}")
            else:
                a(f"s_add_u32 s60, s60, {6*8192}\ns_cmp_lt_u32 s20, 2\ns_cselect_b32 m0, s60, {JUNK}")
            a("v_add_u32 v21, 8192, v21" if st else "s_nop 0")
            a("buffer_load_dwordx4 v21, s[32:35], 0 offen" + nt(2) + " lds")
    a("s_mov_b32 s62, s23")
    eaw = opt.get("eaw", 1)
    if eaw == 0:
        ea_dma()
    a("s_add_u32 s22, s22, %d" % REC)
    srd(a, 44, 18, 19, 6400, add="s22")
    a("s_lshl_b32 s22, s2, 11\ns_add_u32 s22, s22, %d" % OFF)
    srd(a, 48, 18, 19, 2048, add="s22")
    srd(a, 52, 18, 19, 51200, add="s23")
    a(f"s_add_u32 s23, s23, {EAS}")
    srd(a, 24, 18, 19, 51200, add="s23")
    a("s_waitcnt vmcnt(%d)" % (19 if eaw == 0 else 12))
    stamp(a, opt, 1, 0)
    if eaw == 1:
        ea_dma()
    a("s_mov_b64 exec, s[56:57]\ns_movk_i32 s21, 5352\nv_mov_b32 v23, 1338")
    for k in range(4):
        d, s_, b, dl, g, t, rk, b2, rk2 = 10 + k, 14 + k, 24 + k, 28, 29, 30, 32 + k, 52 + k, 56 + k
        a(f"""v_mul_u32_u24 v{b}, 5350, v{d}
        v_lshrrev_b32 v{b}, 19, v{b}
        v_lshrrev_b32 v{t}, 12, v{s_}
        v_and_b32 v{b2}, 0xe0, v{b}
        v_mul_u32_u24 v{dl}, 98, v{b}
        v_lshl_add_u32 v{b}, v{b}, 2, v5
        ds_add_rtn_u32 v{rk}, v{b}, v6 offset:{HIST}
        v_lshl_add_u32 v{b2}, v{t}, 2, v{b2}
        v_add_u32 v{b2}, v{b2}, v37
        ds_add_rtn_u32 v{rk2}, v{b2}, v6 offset:{HIST2}
        v_sub_u32 v{dl}, v{d}, v{dl}
        v_mad_u32_u24 v{g}, v{dl}, s21, v23
        v_lshrrev_b32 v{g}, 16, v{g}
        v_mad_u32_u24 v{t}, v{g}, 49, 2
        v_lshrrev_b32 v{t}, 2, v{t}
        v_sub_u32 v{dl}, v{dl}, v{t}
        v_lshlrev_b32 v{g}, 29, v{g}
        v_lshl_or_b32 v{g}, v{s_}, 14, v{g}
        v_lshl_or_b32 v{s_}, v{dl}, 10, v{g}""")
    a("s_mov_b64 exec, -1")
    a("s_waitcnt lgkmcnt(0)\ns_barrier")
    if eaw == 2:
        ea_dma()
    a(f"""v_lshl_add_u32 v36, v2, 4, v5
    v_lshl_add_u32 v38, v2, 2, v37
    ds_read_b128 v[40:43], v36 offset:{HIST}
    ds_read_b32 v39, v38 offset:{HIST2}
    s_waitcnt lgkmcnt(0)
    v_add_u32 v41, v41, v40
    v_add_u32 v42, v42, v41
    v_add_u32 v43, v43, v42
    v_mov_b32 v44, v43
    v_mov_b32 v51, v39
    s_nop 0""")
    for m in ("row_shr:1 row_mask:0xf", "row_shr:2 row_mask:0xf", "row_shr:4 row_mask:0xf", "row_shr:8 row_mask:0xf",
              "row_bcast:15 row_mask:0xa", "row_bcast:31 row_mask:0xc"):
        a(f"v_add_u32_dpp v44, v44, v44 {m} bank_mask:0xf\nv_add_u32_dpp v51, v51, v51 {m} bank_mask:0xf\ns_nop 0")
    a(f"""v_sub_u32 v44, v44, v43
    v_sub_u32 v51, v51, v39
    v_add_u32 v45, v44, v40
    v_add_u32 v46, v44, v41
    v_add_u32 v47, v44, v42
    ds_write_b128 v36, v[44:47] offset:{BASE}
    ds_write_b32 v38, v51 offset:{BASE2}
    s_and_b32 s61, s20, 3
    s_cmp_lg_u32 s61, 0
    v_add_u32 v63, v44, v43
    v_lshl_or_b32 v60, v45, 16, v44
    v_lshl_or_b32 v61, v46, 16, v45
    v_lshl_or_b32 v62, v47, 16, v46
    v_lshl_or_b32 v63, v63, 16, v47
    v_mov_b32 v50, v36
    s_cbranch_scc0 K1_DOOFF
    v_mov_b32 v50, 0x7ffffff0""")
    a.label("K1_DOOFF")
    a("buffer_store_dwordx4 v[60:63], v50, s[48:51], 0 offen")
    a("s_waitcnt lgkmcnt(0)\ns_mov_b64 exec, s[56:57]")
    for k in range(4):
        a(f"ds_read_b32 v{24+k}, v{24+k} offset:{BASE}\nds_read_b32 v{52+k}, v{52+k} offset:{BASE2}")
    a("v_mul_u32_u24 v23, 3200, v7\nv_lshlrev_b32 v22, 3, v4\ns_waitcnt lgkmcnt(0)")
    for k in range(4):
        a(f"""v_add_u32 v{52+k}, v{52+k}, v{56+k}
        v_add3_u32 v{24+k}, v{24+k}, v{32+k}, v23
        v_lshrrev_b32 v28, 2, v{52+k}
        v_add_u32 v{52+k}, v{52+k}, v23
        v_or_b32 v{14+k}, v{14+k}, v28
        v_add_u32 v29, {EAL+32*k}, v22
        ds_write_b32 v{24+k}, v{14+k} offset:{STAGE}
        ds_write_b32 v{52+k}, v29 offset:{INV}""")
    a("s_mov_b64 exec, -1")
    a("s_waitcnt vmcnt(8) lgkmcnt(0)\ns_barrier")
    stamp(a, opt, 2, 0)
    a(f"""s_mov_b64 exec, s[56:57]
    ds_read_b128 v[10:13], v4 offset:{STAGE}
    s_mov_b64 exec, -1""")
    a(f"""s_and_b32 s62, s20, 3
    s_lshr_b32 s63, s20, 2
    v_bfe_u32 v18, v2, 2, 2
    v_bfe_u32 v19, v2, 4, 1
    v_bfe_u32 v20, v2, 1, 1
    v_lshl_add_u32 v19, v19, 1, v20
    s_lshl_b32 s64, s62, 2
    v_add_u32 v19, s64, v19
    v_lshlrev_b32 v20, 2, v18
    v_xor_b32 v19, v19, v20
    v_lshrrev_b32 v21, 5, v2
    v_lshl_add_u32 v20, v21, 3, v18
    v_lshlrev_b32 v20, 8, v20
    v_lshl_add_u32 v20, v19, 4, v20
    v_and_b32 v19, 1, v2
    v_lshl_add_u32 v20, v19, 3, v20
    v_add_u32 v20, {WL}, v20
    s_waitcnt lgkmcnt(0)
    s_mov_b64 exec, s[56:57]
    buffer_store_dwordx4 v[10:13], v4, s[44:47], 0 offen
    s_mov_b64 exec, -1""")
    a(f"""v_and_b32 v18, 31, v2
    v_xor_b32 v22, v21, v18
    v_and_b32 v22, 15, v22
    v_lshlrev_b32 v22, 4, v22
    v_lshl_add_u32 v22, v18, 8, v22
    s_lshl_b32 s64, s63, 13
    s_add_u32 s64, s64, {XL}
    v_add_u32 v22, s64, v22
    v_lshrrev_b32 v23, 3, v2
    v_lshlrev_b32 v23, 9, v23
    v_and_b32 v19, 7, v2
    v_lshl_add_u32 v23, v19, 4, v23
    s_lshl_b32 s64, s63, 14
    s_lshl_b32 s65, s62, 7
    s_add_u32 s64, s64, s65
    v_add_u32 v23, s64, v23
    s_lshl_b32 s64, s20, 12
    s_add_u32 s64, s64, {WL}
    v_lshl_add_u32 v16, v2, 4, s64
    v_lshlrev_b32 v17, 9, v21
    v_lshl_add_u32 v17, v18, 2, v17
    v_add_u32 v17, s64, v17""")
    for s in range(8):
        a(f"v_xor_b32 v{24+s}, {s*32}, v22")
    for s in range(8):
        a(f"ds_read_b128 v[{32+4*s}:{35+4*s}], v{24+s}")
    cnt = 8
    for s in range(8):
        for mat in range(2):
            for jj in range(2):
                r = 64 + mat * 32 + s * 4 + jj * 2
                a(f"ds_read_b64_tr_b16 v[{r}:{r+1}], v20 offset:{mat*32768+s*4096+jj*1024}")
                cnt += 1
        if s >= 1:
            a("s_waitcnt lgkmcnt(4)")
            p = s - 1
            a(f"v_mfma_f32_32x32x16_bf16 v[128:143], v[{32+4*p}:{35+4*p}], v[{64+4*p}:{67+4*p}], {'0' if p==0 else 'v[128:143]'}")
            a(f"v_mfma_f32_32x32x16_bf16 v[144:159], v[{32+4*p}:{35+4*p}], v[{96+4*p}:{99+4*p}], {'0' if p==0 else 'v[144:159]'}")
    a("s_waitcnt lgkmcnt(0)")
    a("v_mfma_f32_32x32x16_bf16 v[128:143], v[60:63], v[92:95], v[128:143]")
    a("v_mfma_f32_32x32x16_bf16 v[144:159], v[60:63], v[124:127], v[144:159]")
    for s in range(8):
        a(f"ds_read_b128 v[{192+4*s}:{195+4*s}], v{24+s} offset:16384")
    a(f"s_mov_b32 s64, {NEG_LOG2E}\ns_mov_b32 s65, 0x7fff0000\ns_mov_b32 s66, 0xffff")
    a("v_mov_b32 v15, 0x42fc0000\ns_mov_b32 s68, 0xc2fc0000\ns_barrier")
    for s in range(8):
        a(f"s_waitcnt lgkmcnt({7-s})")
        a(f"v_mfma_f32_32x32x16_bf16 v[160:175], v[{192+4*s}:{195+4*s}], v[{64+4*s}:{67+4*s}], {'0' if s==0 else 'v[160:175]'}")
        a(f"v_mfma_f32_32x32x16_bf16 v[176:191], v[{192+4*s}:{195+4*s}], v[{96+4*s}:{99+4*s}], {'0' if s==0 else 'v[176:191]'}")

    def pack(xb, hv, g):
        for r in range(4):
            x, h, t = xb + 4 * g + r, hv + 4 * g + r, 32 + r
            if opt.get("f16"):
                a(f"""v_mul_f32 v{x}, s64, v{x}
                v_cvt_f16_f32 v{h}, v{h}
                v_med3_f32 v{x}, v{x}, s68, v15
                v_and_b32 v{h}, 0xffff, v{h}
                v_exp_f32 v{x}, v{x}
                v_sub_u32 v{t}, 0x8000, v{h}
                v_add_u32 v{x}, v{x}, v{t}
                v_bfi_b32 v{x}, s66, v{h}, v{x}""")
            else:
                a(f"""v_mul_f32 v{x}, s64, v{x}
                v_and_b32 v{t}, 0x7fffffff, v{h}
                v_cvt_f16_f32 v{x}, v{x}
                v_add_u32 v{t}, 0x8000, v{t}
                v_and_b32 v{x}, 0xffff, v{x}
                v_sub_u32_e64 v{t}, v{t}, v{x} clamp
                v_bfi_b32 v{t}, s65, v{t}, v{h}
                v_bfi_b32 v{x}, s66, v{x}, v{t}""")
            a(f"ds_write_b32 v17, v{x} offset:{g*1024+r*128}")

    def flush(tidx, ks, buf):
        for k in ks:
            a(f"ds_read_b128 v[{buf+4*k}:{buf+4*k+3}], v16 offset:{k*1024}")
        for k in ks:
            a(f"s_mov_b32 s67, {k*4096+tidx*32768}\ns_waitcnt lgkmcnt({len(ks)-1-k})")
            a(f"buffer_store_dwordx4 v[{buf+4*k}:{buf+4*k+3}], v23, s[52:55], s67 offen")

    stamp(a, opt, 3, 0)
    for g in range(4):
        pack(128, 144, g)
    flush(0, range(4), 40)
    a("s_cmp_eq_u32 s63, 1\ns_cbranch_scc0 K1_FULL2")
    pack(160, 176, 0)
    a("s_mov_b32 exec_hi, 0")
    flush(1, range(1), 64)
    a("s_branch K1_FIN")
    a.label("K1_FULL2")
    for g in range(4):
        pack(160, 176, g)
    flush(1, range(4), 64)
    a.label("K1_FIN")
    stamp(a, opt, 4, 0)
    if opt.get("ct", 1) & 2:
        a("s_mov_b64 exec, -1")
        code_touch(a, "K1_CT1", "k2_kernel", 2, 22, 2, 222, 223)
    a(f"""s_mov_b64 exec, -1
    v_lshrrev_b32 v10, 1, v0
    v_lshlrev_b32 v10, 2, v10
    v_and_b32 v11, 1, v0
    v_lshlrev_b32 v11, 4, v11
    v_lshlrev_b32 v12, 4, v0""")
    for n in range(7):
        a(f"ds_read_b32 v{16+n}, v10 offset:{INV+1024*n}")
    a("s_waitcnt vmcnt(%d)\ns_barrier" % (opt.get("k1w", 7) + (2 if opt.get("ct", 1) & 2 else 0)))
    a("s_waitcnt lgkmcnt(0)")
    for n in range(7):
        a(f"v_add_u32 v{16+n}, v{16+n}, v11\nds_read_b128 v[{32+4*n}:{35+4*n}], v{16+n}")
    for n in range(7):
        a(f"s_waitcnt lgkmcnt({6-n})")
        if n:
            a("v_add_u32 v12, 8192, v12")
        a(f"buffer_store_dwordx4 v[{32+4*n}:{35+4*n}], v12, s[24:27], 0 offen")
    dbg(a, opt, 1, False, 0, True)
    if opt.get("stamp"):
        a("s_waitcnt vmcnt(0)")
        stamp(a, opt, 5, 0)
        stamp_flush(a, opt, 6, 0, 18, 19, 20)
    a("s_endpgm")

    a.label("K1_PREP")
    a("""s_sub_u32 s21, s2, 250
    s_lshl_b32 s21, s21, 3
    s_add_u32 s21, s21, s20
    v_lshrrev_b32 v3, 4, v2
    v_and_b32 v4, 15, v2
    v_lshlrev_b32 v5, 11, v3
    v_lshl_add_u32 v5, v4, 3, v5
    v_lshlrev_b32 v6, 4, v2
    v_lshlrev_b32 v7, 10, v3
    v_lshl_add_u32 v7, v4, 3, v7
    v_lshlrev_b32 v8, 5, v4
    v_lshl_add_u32 v8, v3, 3, v8
    s_waitcnt lgkmcnt(0)""")
    srd(a, 24, 16, 17, 272 * 256)
    srd(a, 28, 12, 13, 32768)
    srd(a, 32, 18, 19, 0x20000, add=WF)
    a.label("K1_PTASK")
    a("""s_cmp_ge_u32 s21, 64
    s_cbranch_scc1 K1_PC
    s_bfe_u32 s40, s21, 0x30002
    s_and_b32 s41, s21, 3
    s_lshl_b32 s41, s41, 13
    s_lshr_b32 s42, s40, 2
    s_lshl_b32 s42, s42, 7
    s_and_b32 s43, s40, 3
    s_lshl_b32 s43, s43, 1
    s_add_u32 s41, s41, s42
    s_add_u32 s41, s41, s43
    s_lshl_b32 s44, s21, 10
    s_cmp_ge_u32 s21, 32
    s_cbranch_scc1 K1_PU""")
    for j in range(8):
        a(f"buffer_load_ushort v{16+j}, v5, s[24:27], s41 offen offset:{j*256}")
    a("s_branch K1_PW")
    a.label("K1_PU")
    for j in range(8):
        a(f"buffer_load_ushort v{16+j}, v5, s[28:31], s41 offen offset:{j*256}")
    a.label("K1_PW")
    a("s_waitcnt vmcnt(0)")
    for j in range(4):
        a(f"v_lshl_or_b32 v{24+j}, v{17+2*j}, 16, v{16+2*j}")
    a("buffer_store_dwordx4 v[24:27], v6, s[32:35], s44 offen")
    a("s_add_u32 s21, s21, 48\ns_cmp_lt_u32 s21, 72\ns_cbranch_scc1 K1_PTASK\ns_endpgm")
    a.label("K1_PC")
    a(f"""s_sub_u32 s40, s21, 64
    s_lshr_b32 s42, s40, 2
    s_lshl_b32 s42, s42, 7
    s_and_b32 s43, s40, 3
    s_lshl_b32 s43, s43, 1
    s_add_u32 s41, s42, s43
    s_add_u32 s41, s41, 65536
    s_lshl_b32 s44, s40, 9
    s_add_u32 s44, s44, {CF-WF}
    s_mov_b32 s45, {NEG_LOG2E}""")
    for j in range(4):
        a(f"buffer_load_ushort v{16+j}, v7, s[24:27], s41 offen offset:{j*256}")
    a("s_waitcnt vmcnt(0)")
    for j in range(4):
        a(f"v_lshlrev_b32 v{16+j}, 16, v{16+j}")
    for j in range(4):
        a(f"v_mul_f32 v{16+j}, s45, v{16+j}")
    a("v_cvt_pk_bf16_f32 v24, v16, v17\nv_cvt_pk_bf16_f32 v25, v18, v19")
    a("buffer_store_dwordx2 v[24:25], v8, s[32:35], s44 offen")
    a.label("K1_END")
    a("s_endpgm")
    return a, 161792


HIST, BASE, TG, TS, FLAG, PROG = 0, 1024, 2048, 2560, 3072, 3136
GSTR = 352 * 4
LSD = 3328
LEA = LSD + 8 * GSTR
XR = LEA + 8 * GSTR
JUNK2 = XR + 104 * 256
CFL = JUNK2 + 1024
XAL = CFL + 4096
WFL = XAL + 32768
K2_LDS = WFL + 65536
CAP4 = 320 * 4
ACC, BOP, P, Z, GA, SA = 128, 160, 192, 208, 224, 240
VLANE, VGC, VSC, PSRC, PG, PD, VTID, VCUR, VEND, VGM, VT0, VT1 = range(244, 256)
SHIFT_BIN = 24


def G(slot, s, r, hh, t=0):
    return slot * 64 + s * 32 + r * 8 + hh * 4 + t


def q4(r):
    return f"v[{r}:{r+3}]"


def idx_reads(a, slot, toff):
    a(f"ds_read_b128 {q4(G(slot,1,0,0))}, v{PSRC} offset:{toff*128}")
    a(f"ds_read_b128 {q4(G(slot,1,1,0))}, v{PSRC} offset:{toff*128+64}")
    r = G(slot, 1, 2, 0)
    a(f"ds_read2_b32 v[{r}:{r+1}], v{PG} offset0:{toff*32} offset1:{toff*32+16}")


def issue_parts(slot):
    r = G(slot, 1, 2, 0)
    ga = GA + slot * 8
    addr = [f"v_and_or_b32 v{ga}, v{r}, v{VGM}, v{VGC}", f"v_and_or_b32 v{ga+4}, v{r+1}, v{VGM}, v{VGC}"]
    for s in range(2):
        for rr in range(4):
            addr.append(f"v_and_or_b32 v{G(slot,s,rr,1)}, v{G(slot,1,s,0)+rr}, s55, v{VLANE}")
    masked = ["s_mov_b32 exec_hi, 0",
              f"buffer_load_dwordx4 {q4(ga)}, v{ga}, s[16:19], 0 offen",
              f"buffer_load_dwordx4 {q4(ga+4)}, v{ga+4}, s[16:19], 0 offen",
              "s_mov_b64 exec, s[50:51]",
              f"ds_read_b128 {q4(ga)}, v{ga}",
              f"ds_read_b128 {q4(ga+4)}, v{ga+4}",
              "s_mov_b64 exec, -1"]
    loads = []
    for s in range(2):
        for hh in range(2):
            for rr in range(4):
                off = " offset:256" if hh else ""
                loads.append(f"buffer_load_dwordx4 {q4(G(slot,s,rr,hh))}, v{G(slot,s,rr,1)}, s[12:15], 0 offen{off}")
    return addr, masked, loads


def mf16(d, aa, b, c):
    return f"v_mfma_f32_16x16x32_bf16 {q4(d)}, {q4(aa)}, {q4(b)}, {c}"


def mf16h(d, aa, b, c):
    return f"v_mfma_f32_16x16x16_bf16 {q4(d)}, v[{aa}:{aa+1}], v[{b}:{b+1}], {c}"


def weave(a, main, extra, start=0, step=1):
    e = list(extra)
    for i, m in enumerate(main):
        a(m)
        if e and i >= start and (i - start) % step == 0:
            a(e.pop(0))
    for x in e:
        a(x)


def enable_srds(a, opt):
    a(f"s_cselect_b32 s14, {0 if opt.get('notab') else TAB_SZ}, 0\ns_cselect_b32 s18, {0 if opt.get('noea') else TAB_SZ}, 0")


def tile(a, opt, slot, toff, half=False, filler=None):
    pk = opt.get("pk", 1)
    f16 = opt.get("f16", 0)
    dyn = opt.get("prio") == 2 and not half
    ga = GA + slot * 8
    gan = GA + (1 - slot) * 8
    addr, masked, loads = issue_parts(1 - slot)
    easplit = opt.get("easplit", 0)
    if easplit:
        masked2 = [masked[0], masked[2], masked[3], masked[5], masked[6]]
        masked = [masked[0], masked[1], masked[3], masked[4], masked[6]]
    nl = {0: (8, 8, 0, 0), 1: (16, 0, 0, 0), 2: (12, 4, 0, 0), 3: (6, 6, 4, 0), 4: (4, 4, 4, 4), 5: (6, 4, 4, 2), 6: (2, 4, 4, 6)}[opt.get("spread", 4)]
    issued = 0
    if opt.get("stamp"):
        a("s_memrealtime s[94:95]")
    a(f"ds_read2_b32 v[{SA}:{SA+1}], v{PD} offset0:{toff*32} offset1:{toff*32+16}")
    dyn2 = dyn and opt.get("p2")
    if dyn2:
        a(f"s_lshl_b32 s47, s46, 1\nv_mov_b32 v{VT1}, s47\nds_write2_b32 v{VT0}, v{VT1}, v{VT1} offset0:0 offset1:16\nds_read_b32 v{VT1}, v{VT0} offset:32")
    elif dyn and opt.get("rem"):
        a(f"s_sub_u32 s47, s45, s46\nv_mov_b32 v{VT1}, s47\nds_write2_b32 v{VT0}, v{VT1}, v{VT1} offset0:0 offset1:16\nds_read_b32 v{VT1}, v{VT0} offset:32")
    elif dyn:
        a(f"v_mov_b32 v{VT1}, s46\nds_write2_b32 v{VT0}, v{VT1}, v{VT1} offset0:0 offset1:16\nds_read_b32 v{VT1}, v{VT0} offset:32")
    if opt.get("nosel"):
        a("s_add_u32 s46, s46, 1")
    elif not half:
        a("s_add_u32 s46, s46, 1\ns_cmp_lt_u32 s46, s45")
        enable_srds(a, opt)
    seg_pending = []
    for ph in range(2 if half else 4):
        s, hh = ph >> 1, ph & 1
        if ph == 3:
            gate = [mf16(P + 4 * t, gan, BOP + 4 * t, "0") for t in range(4)]
        elif half and ph == 1:
            gate = []
        else:
            ns, nh = (ph + 1) >> 1, (ph + 1) & 1
            gate = [mf16(P + 4 * t, ga + 4 * ns, BOP + 16 * nh + 4 * t, "0") for t in range(4)]
        order = ["e0"] + ([] if easplit else ["e1"])
        for k in range(4):
            if easplit and k == easplit:
                order.append("e1")
            order += [f"g{k}"] * 4
        need = [f"g{ph}"] + (["e1"] if ph == 1 or (ph == 0 and not half) else [])
        if ph == 0:
            need = ["g0"]
        if ph == 1 and not half:
            need = ["g1", "e1"]
        last = max(i for i, x in enumerate(order) if x in need)
        allow = len(order) - 1 - last + issued
        if f16:
            first = [f"v_exp_f32 v{Z+4*r+t}, v{P+4*t+r}" for t in range(4) for r in range(4)]
        else:
            a(f"s_waitcnt vmcnt({allow})")
            first = [f"v_fma_mix_f32 v{Z+4*r+t}, v{G(slot,s,r,hh,t)}, 1.0, v{P+4*t+r} op_sel_hi:[1,0,0]"
                     for t in range(4) for r in range(4)]
        weave(a, first, seg_pending, start=1, step=1 if f16 else 2)
        seg_pending = []
        if f16:
            a(f"s_waitcnt vmcnt({12-4*ph+issued})")
        mine = []
        if ph == 0:
            a("s_waitcnt lgkmcnt(0)")
            if opt.get("stamp"):
                a(f"s_sub_u32 m0, s46, {0 if half else 1}\nv_writelane_b32 v{VEND}, s94, m0")
            if dyn:
                a(f"v_readfirstlane_b32 s56, v{VT1}")
            a(f"v_and_or_b32 v{SA+2}, v{SA+1}, s54, v{VSC}\nv_and_or_b32 v{SA}, v{SA}, s54, v{VSC}")
            a(f"ds_read_b64_tr_b16 v[{SA+2}:{SA+3}], v{SA+2}\nds_read_b64_tr_b16 v[{SA}:{SA+1}], v{SA}")
            if dyn2:
                lab = f"K2_PR{slot}"
                a(f"s_setprio 1\ns_cmp_gt_u32 s47, s56\ns_cbranch_scc0 {lab}\ns_setprio 0")
                a.label(lab)
            elif dyn and opt.get("rem"):
                lab = f"K2_PR{slot}"
                cmp_ = "s_cmp_lt_u32" if opt["rem"] == 1 else "s_cmp_le_u32"
                a(f"s_setprio 1\n{cmp_} s47, s56\ns_cbranch_scc0 {lab}\ns_setprio 0")
                a.label(lab)
            elif dyn and opt.get("lag"):
                lab = f"K2_PR{slot}"
                a(f"s_add_u32 s47, s56, {opt['lag']+1}\ns_cmp_gt_u32 s46, s47\ns_cbranch_scc0 {lab}_G\ns_movk_i32 s38, 2048")
                a.label(lab + "_W")
                a(f"""s_sleep 1
                ds_read_b32 v{VT1}, v{VT0} offset:32
                s_sub_u32 s38, s38, 1
                s_cbranch_scc1 {lab}_G
                s_waitcnt lgkmcnt(0)
                v_readfirstlane_b32 s56, v{VT1}
                s_add_u32 s47, s56, {opt['lag']+1}
                s_cmp_gt_u32 s46, s47
                s_cbranch_scc1 {lab}_W""")
                a.label(lab + "_G")
                a(f"s_add_u32 s56, s56, 1\ns_setprio 1\ns_cmp_gt_u32 s46, s56\ns_cbranch_scc0 {lab}\ns_setprio 0")
                a.label(lab)
            elif dyn:
                lab = f"K2_PR{slot}"
                a(f"s_add_u32 s56, s56, {opt.get('pd', 1)}\ns_setprio 1\ns_cmp_gt_u32 s46, s56\ns_cbranch_scc0 {lab}\ns_setprio 0")
                a.label(lab)
            if not half:
                for x in addr + masked:
                    a(x)
                issued += 1 if easplit else 2
        if dyn2 and ph == 1:
            a(f"s_add_u32 s47, s47, 1\nv_mov_b32 v{VT1}, s47\nds_write2_b32 v{VT0}, v{VT1}, v{VT1} offset0:0 offset1:16\nds_read_b32 v{VT1}, v{VT0} offset:32")
        if dyn2 and ph == 2:
            lab = f"K2_PQ{slot}"
            a(f"s_waitcnt lgkmcnt(0)\nv_readfirstlane_b32 s56, v{VT1}\ns_setprio 1\ns_cmp_gt_u32 s47, s56\ns_cbranch_scc0 {lab}\ns_setprio 0")
            a.label(lab)
        if easplit and ph == easplit and not half:
            for x in masked2:
                a(x)
            issued += 1
        if not half:
            mine = loads[:nl[ph]]
            loads = loads[nl[ph]:]
            issued += len(mine)
        eawait = f"s_waitcnt vmcnt({issued-len(mine)-(1 if easplit else 2)}) lgkmcnt(3)"
        rcps = [f"v_rcp_f32 v{Z+i}, v{Z+i}" for i in range(16)]
        if f16:
            for r in range(4):
                for t in (0, 2):
                    z, g = Z + 4 * r + t, G(slot, s, r, hh, t)
                    a(f"v_pk_fma_f32 v[{z}:{z+1}], v[{z}:{z+1}], v[{g}:{g+1}], 1.0 op_sel_hi:[1,1,0]")
            if ph == 3:
                a(eawait)
            weave(a, rcps, gate + mine, start=0, step=1)
            if f16 == 1:
                for t in range(4):
                    for j in range(2):
                        m, r = G(slot, 0, t, hh) + 2 * s + j, 2 * j + 1
                        a(f"v_fma_mixhi_f16 v{m}, v{Z+4*r+t}, v{G(slot,s,r,hh,t)}, 0 op_sel_hi:[0,1,0]")
                for t, j in ((0, 0), (1, 0), (0, 1), (1, 1), (2, 0), (2, 1), (3, 0), (3, 1)):
                    m, r = G(slot, 0, t, hh) + 2 * s + j, 2 * j
                    a(f"v_fma_mixlo_f16 v{m}, v{Z+4*r+t}, v{G(slot,s,r,hh,t)}, 0 op_sel_hi:[0,1,0]")
            else:
                for r in range(4):
                    for t in range(4):
                        a(f"v_fma_mix_f32 v{Z+4*r+t}, v{Z+4*r+t}, v{G(slot,s,r,hh,t)}, 0 op_sel_hi:[0,1,0]")
        else:
            if ph == 3:
                a(eawait)
            exps = [f"v_exp_f32 v{Z+i}, v{Z+i}" for i in range(16)]
            h2 = len(mine) // 2
            if len(mine) == 4:
                ex2 = list(exps)
                ex2[7] += "\n" + mine[0]
                ex2[15] += "\n" + mine[1]
                weave(a, ex2, gate, start=0, step=1)
            else:
                weave(a, exps, gate + mine[:h2], start=0, step=2 if 0 < len(mine) <= 8 else 1)
            if pk:
                for i in range(0, 16, 2):
                    a(f"v_pk_add_f32 v[{Z+i}:{Z+i+1}], v[{Z+i}:{Z+i+1}], 1.0 op_sel_hi:[1,0]")
            else:
                for i in range(16):
                    a(f"v_add_f32 v{Z+i}, 1.0, v{Z+i}")
            weave(a, rcps, mine[h2:], start=4 if len(mine) == 4 else 1, step=9 if len(mine) == 4 else 3 if len(mine) <= 8 else 2)
            for r in range(4):
                if pk:
                    for t in (0, 2):
                        z, g = Z + 4 * r + t, G(slot, s, r, hh, t)
                        a(f"v_pk_mul_f32 v[{z}:{z+1}], v[{z}:{z+1}], v[{g}:{g+1}]")
                else:
                    for t in range(4):
                        a(f"v_mul_f32 v{Z+4*r+t}, v{Z+4*r+t}, v{G(slot,s,r,hh,t)}")
        if ph == 2:
            idx_reads(a, slot, toff + 2)
        if f16 != 1:
            for t in range(4):
                m = G(slot, 0, t, hh) + 2 * s
                a(f"v_cvt_pk_bf16_f32 v{m}, v{Z+t}, v{Z+4+t}\nv_cvt_pk_bf16_f32 v{m+1}, v{Z+8+t}, v{Z+12+t}")
        fx = (lambda m: m.replace("_bf16", "_f16")) if f16 == 1 else (lambda m: m)
        mfs = mf16h if half else mf16
        seg = [fx(mfs(ACC + 16 * hh + 4 * t, SA, G(slot, 0, t, hh), q4(ACC + 16 * hh + 4 * t))) for t in range(4)]
        if half and ph == 0:
            a("s_waitcnt lgkmcnt(0)")
            seg_pending = seg
        elif ph == 2:
            a("s_waitcnt lgkmcnt(3)")
            seg_pending = seg
        elif ph == 3 or half:
            a("\n".join(filler) if filler else "s_nop 1")
            for m in seg:
                a(m)


def last_tile(a, opt, slot, toff, nsub):
    ga = GA + slot * 8
    tag = f"K2_L{slot}{nsub}"
    if opt.get("lag"):
        a(f"v_mov_b32 v{VT1}, 0x7fff\nds_write2_b32 v{VT0}, v{VT1}, v{VT1} offset0:0 offset1:16")
    a(f"ds_read2_b32 v[{SA}:{SA+1}], v{PD} offset0:{toff*32} offset1:{toff*32+16}")
    seg_pending = []
    nph = 2 * nsub
    for ph in range(nph):
        s, hh = ph >> 1, ph & 1
        tail = s == nsub - 1
        gate = []
        if ph + 1 < nph:
            ns, nh = (ph + 1) >> 1, (ph + 1) & 1
            gate = [mf16(P + 4 * t, ga + 4 * ns, BOP + 16 * nh + 4 * t, "0") for t in range(4)]
        a(f"s_waitcnt vmcnt({12-4*ph})")
        mix = lambda r, t: f"v_fma_mix_f32 v{Z+4*r+t}, v{G(slot,s,r,hh,t)}, 1.0, v{P+4*t+r} op_sel_hi:[1,0,0]"
        if tail:
            for m in seg_pending:
                a(m)
            for r in range(4):
                if r:
                    a(f"s_cmp_le_u32 s59, {r}\ns_cbranch_scc1 {tag}_M{ph}")
                for t in range(4):
                    a(mix(r, t))
            a.label(f"{tag}_M{ph}")
        else:
            weave(a, [mix(r, t) for t in range(4) for r in range(4)], seg_pending, start=1, step=2)
        seg_pending = []
        if ph == 0:
            a("s_waitcnt lgkmcnt(0)")
            a(f"v_and_or_b32 v{SA+2}, v{SA+1}, s54, v{VSC}\nv_and_or_b32 v{SA}, v{SA}, s54, v{VSC}")
            a(f"ds_read_b64_tr_b16 v[{SA+2}:{SA+3}], v{SA+2}\nds_read_b64_tr_b16 v[{SA}:{SA+1}], v{SA}")
        add = lambda z: f"v_pk_add_f32 v[{z}:{z+1}], v[{z}:{z+1}], 1.0 op_sel_hi:[1,0]"
        mul = lambda r, t: (f"v_pk_mul_f32 v[{Z+4*r+t}:{Z+4*r+t+1}], v[{Z+4*r+t}:{Z+4*r+t+1}], "
                            f"v[{G(slot,s,r,hh,t)}:{G(slot,s,r,hh,t)+1}]")
        if tail:
            for r in range(4):
                if r:
                    a(f"s_cmp_le_u32 s59, {r}\ns_cbranch_scc1 {tag}_C{ph}")
                weave(a, [f"v_exp_f32 v{Z+4*r+t}, v{Z+4*r+t}" for t in range(4)], gate if r == 0 else [])
                a(add(Z + 4 * r) + "\n" + add(Z + 4 * r + 2))
                for t in range(4):
                    a(f"v_rcp_f32 v{Z+4*r+t}, v{Z+4*r+t}")
                a(mul(r, 0) + "\n" + mul(r, 2))
            a.label(f"{tag}_C{ph}")
        else:
            weave(a, [f"v_exp_f32 v{Z+i}, v{Z+i}" for i in range(16)], gate)
            for i in range(0, 16, 2):
                a(add(Z + i))
            for i in range(16):
                a(f"v_rcp_f32 v{Z+i}, v{Z+i}")
            for r in range(4):
                a(mul(r, 0) + "\n" + mul(r, 2))
        for t in range(4):
            m = G(slot, 0, t, hh) + 2 * s
            a(f"v_cvt_pk_bf16_f32 v{m}, v{Z+t}, v{Z+4+t}\nv_cvt_pk_bf16_f32 v{m+1}, v{Z+8+t}, v{Z+12+t}")
        if tail:
            mfs = mf16h if nsub == 1 else mf16
            seg = [mfs(ACC + 16 * hh + 4 * t, SA, G(slot, 0, t, hh), q4(ACC + 16 * hh + 4 * t)) for t in range(4)]
            a("s_waitcnt lgkmcnt(0)")
            if hh == 0:
                seg_pending = seg
            else:
                a("s_nop 0")
                for m in seg:
                    a(m)


def gen_k2(opt):
    a = Asm()
    npf = opt.get("npf", 0)
    a.label("k2_kernel")
    a("""s_and_b32 s3, s2, 7
    s_lshl_b32 s3, s3, 5
    s_lshr_b32 s57, s2, 3
    s_add_u32 s32, s57, s3
    s_cmp_ge_u32 s2, 256
    s_cbranch_scc1 K2_END""")
    stamp(a, opt, 0, 1)
    dbg(a, opt, 2, True, 1)
    a(f"""s_load_dwordx4 s[4:7], s[0:1], 0
    s_load_dwordx2 s[8:9], s[0:1], 56
    s_load_dwordx2 s[10:11], s[0:1], 72
    s_lshl_b32 s57, s57, 16
    v_mov_b32 v{VTID}, v0
    v_lshrrev_b32 v1, 6, v0
    v_and_b32 v2, 63, v0
    v_readfirstlane_b32 s33, v1""")
    if opt.get("ct", 1) & 4:
        code_touch(a, "K2_CT0", "K2_CT0", 2, 34, 2, 126, 127)
    a(f"""v_and_b32 v3, 15, v2
    v_lshrrev_b32 v4, 4, v2
    v_lshlrev_b32 v{VLANE}, 4, v3
    s_mov_b32 s50, 0
    s_mov_b32 s51, -1
    v_lshlrev_b32 v{VGC}, 4, v4
    v_mov_b32 v{VGM}, -1
    s_mov_b64 exec, s[50:51]
    v_add_u32 v{VGC}, {TG-32}, v{VGC}
    v_mov_b32 v{VGM}, 0x1e0
    s_mov_b64 exec, -1
    v_and_b32 v5, 3, v2
    v_lshlrev_b32 v5, 3, v5
    v_add_u32 v{VSC}, {TS}, v5
    v_lshlrev_b32 v6, 10, v0
    s_lshl_b32 s34, s32, 2
    s_add_u32 s34, s34, {OFF}
    v_mov_b32 v{VCUR}, 0
    v_mov_b32 v{VEND}, 0
    s_mul_i32 s36, s32, 25088
    s_movk_i32 s54, 0x1e0
    s_mov_b32 s55, 0xfffe00""")
    a(f"""v_bfe_u32 v14, v0, 3, 4
    v_and_b32 v11, 7, v0
    s_movk_i32 s37, 128
    v_cmp_gt_u32 vcc, s37, v0
    v_mov_b32 v17, 0x3f80
    v_mov_b32 v18, {0x3c00 if opt.get("f16") == 1 else 0x3f80}
    v_cndmask_b32 v17, v18, v17, vcc
    v_and_b32 v16, 1, v14
    v_lshlrev_b32 v16, 4, v16
    v_lshlrev_b32 v17, v16, v17
    v_lshrrev_b32 v14, 1, v14
    v_cmp_eq_u32 vcc, v14, v11
    v_lshlrev_b32 v15, 2, v0
    s_cmp_ge_u32 s33, 4
    v_add_u32 v15, {TG}, v15
    v_cndmask_b32 v17, 0, v17, vcc
    s_cbranch_scc0 K2_TAB
    v_mov_b32 v17, 0
    v_lshlrev_b32 v18, 2, v2
    v_subrev_u32 v15, {TG+1024}, v15
    ds_write_b32 v18, v17 offset:{FLAG}""")
    a.label("K2_TAB")
    a(f"""ds_write_b32 v15, v17
    s_movk_i32 s35, 500
    v_cmp_gt_u32 vcc, s35, v0
    s_waitcnt lgkmcnt(0)""")
    srd(a, 20, 10, 11, WS_USED)
    a(f"""s_mov_b64 exec, vcc
    buffer_load_dword v{VEND}, v6, s[20:23], s34 offen
    s_mov_b64 exec, -1""")
    srd(a, 24, 4, 5, 26624, add="s36")
    a("s_sub_u32 s37, 6400000, s36\ns_min_u32 s26, s26, s37")
    a(f"""s_lshl_b32 s37, s33, 2
    v_add_u32 v8, s37, v4
    v_xor_b32 v9, v8, v2
    v_and_b32 v9, 15, v9
    v_lshlrev_b32 v9, 4, v9
    v_lshl_add_u32 v9, v8, 8, v9
    v_mov_b32 v{VT0}, v9
    s_barrier""")
    srd(a, 12, 10, 11, TAB_SZ)
    srd(a, 16, 10, 11, TAB_SZ, add=EAS)
    srd(a, 28, 8, 9, 25088, add="s36")
    a("s_sub_u32 s37, 6400000, s36\ns_min_u32 s30, s30, s37")
    a("s_mov_b32 s40, 0\ns_movk_i32 s41, 512\ns_mov_b32 s42, 1\ns_mov_b32 s58, 1")
    a(f"""v_mul_u32_u24 v10, 3200, v0
    s_waitcnt vmcnt(0)
    v_add_u32_sdwa v{VCUR}, v{VEND}, v10 dst_sel:DWORD dst_unused:UNUSED_PAD src0_sel:WORD_0 src1_sel:DWORD
    v_add_u32_sdwa v{VEND}, v{VEND}, v10 dst_sel:DWORD dst_unused:UNUSED_PAD src0_sel:WORD_1 src1_sel:DWORD""")
    stamp(a, opt, 1, 1)

    R, RK, BN = 64, 80, 96
    VREM, VFOUR, VCB = 112, 113, 114
    a.label("K2_ROUND")
    a(f"""v_subrev_u32 v5, s40, v{VTID}
    v_cmp_gt_u32 vcc, s41, v5
    v_sub_u32 v{VREM}, v{VEND}, v{VCUR}
    s_mov_b32 s37, {REC}
    v_cndmask_b32 v{VREM}, 0, v{VREM}, vcc
    s_nop 0""")
    for m in range(4):
        a(f"""v_cmp_lt_u32 vcc, {16*m}, v{VREM}
        s_and_b64 exec, exec, vcc
        s_cbranch_scc0 K2_LDONE
        buffer_load_dwordx4 {q4(R+4*m)}, v{VCUR}, s[20:23], s37 offen offset:{16*m}""")
    a.label("K2_LDONE")
    a("s_mov_b64 exec, -1")
    pos = [(opt.get("bpos", 112) // 100) % 10, (opt.get("bpos", 112) // 10) % 10, opt.get("bpos", 112) % 10]

    def bulk(p):
        if p not in pos:
            return 0
        n = 0
        lab = f"K2_NOB{p}"
        a(f"s_cmp_eq_u32 s42, 0\ns_cbranch_scc1 {lab}" if p else "")
        a(f"v_and_b32 v115, 63, v{VTID}\nv_lshlrev_b32 v115, 4, v115")
        if pos[0] == p:
            a(f"s_lshl_b32 s37, s33, 10\ns_add_u32 s37, s37, {XR}")
            for st in range(4):
                if st < 3:
                    a(f"s_add_u32 m0, s37, {st*8192}")
                else:
                    a(f"s_add_u32 s37, s37, {3*8192}\ns_cmp_lt_u32 s33, 2\ns_cselect_b32 m0, s37, {JUNK2}")
                a(f"v_add_u32 v116, {st*8192}, v{VT0}")
                a(f"buffer_load_dwordx4 v116, s[24:27], 0 offen lds")
            a(f"""s_and_b32 s37, s33, 3
            s_lshl_b32 s37, s37, 10
            s_add_u32 m0, s37, {CFL}
            s_add_u32 s37, s37, {CF}
            buffer_load_dwordx4 v115, s[20:23], s37 offen lds""")
            n += 5
        for mat in range(2):
            if pos[1 + mat] == p:
                a(f"""s_lshl_b32 s37, s33, 12
                s_add_u32 m0, s37, {WFL+mat*32768}
                s_add_u32 s38, s37, {WF+mat*32768}""")
                for k in range(4):
                    a(f"buffer_load_dwordx4 v115, s[20:23], s38 offen offset:{k*1024} lds")
                n += 4
        if p:
            a.label(lab)
        return n

    a("s_cmp_eq_u32 s42, 0\ns_cbranch_scc1 K2_NOGEMM")
    n0 = bulk(0)
    a(f"s_waitcnt vmcnt({n0})\ns_branch K2_COUNT")
    a.label("K2_NOGEMM")
    a("s_waitcnt vmcnt(0)")
    a.label("K2_COUNT")
    stamp(a, opt, 5, 1)
    a(f"""v_mov_b32 v{VFOUR}, 4
    v_mul_u32_u24 v{VCB}, 25600, v{VTID}
    v_and_b32 v2, 63, v{VTID}
    v_mov_b32 v4, 0
    s_movk_i32 s37, 2""")
    for j in range(16):
        a(f"""v_cmpx_lt_u32 vcc, {4*j}, v{VREM}
        v_lshlrev_b32_sdwa v{BN+j}, s37, v{R+j} dst_sel:DWORD dst_unused:UNUSED_PAD src0_sel:DWORD src1_sel:BYTE_3""")
        if opt.get("binmask"):
            a(f"v_and_b32 v{BN+j}, {opt['binmask']}, v{BN+j}")
        if j >= 4:
            a("s_cbranch_execz K2_CDONE")
        a(f"ds_add_rtn_u32 v{RK+j}, v{BN+j}, v{VFOUR} offset:{HIST}")
    a(f"""v_cmp_lt_u32 vcc, 64, v{VREM}
    s_and_b64 exec, exec, vcc
    s_cbranch_scc0 K2_CDONE
    ds_write_b32 v4, v{VFOUR} offset:{FLAG}""")
    a.label("K2_CDONE")
    a("s_mov_b64 exec, -1")
    bulk(1)
    if npf:
        a(f"s_cmp_eq_u32 s42, 0\ns_cbranch_scc1 K2_NOPF\nv_lshl_add_u32 v115, v{VTID}, 7, s57\nbuffer_load_dword v116, v115, s[12:15], 0 offen")
        a.label("K2_NOPF")
    a(f"""v_lshrrev_b32 v5, 3, v2
    v_lshlrev_b32 v6, 4, v2
    v_mul_u32_u24 v16, {GSTR}, v5
    v_and_b32 v5, 7, v2
    v_add_u32 v12, -1, v5
    v_add_u32 v13, -2, v5
    v_add_u32 v14, -4, v5
    v_ashrrev_i32 v12, 31, v12
    v_ashrrev_i32 v13, 31, v13
    v_ashrrev_i32 v14, 31, v14
    s_waitcnt lgkmcnt(0)
    s_barrier""")
    stamp(a, opt, 6, 1)
    a(f"""ds_read_b128 v[8:11], v6 offset:{HIST}
    ds_read_b32 v7, v4 offset:{FLAG}
    s_waitcnt lgkmcnt(0)
    v_add_u32 v9, v9, v8
    v_add_u32 v10, v10, v9
    v_add_u32 v11, v11, v10
    v_mov_b32 v24, v11
    v_readfirstlane_b32 s48, v7
    s_nop 0""")
    for n, k in enumerate((1, 2, 4)):
        a(f"""v_mov_b32_dpp v15, v24 row_shr:{k} row_mask:0xf bank_mask:0xf
        v_bfi_b32 v15, v{12+n}, 0, v15
        v_add_u32 v24, v24, v15
        s_nop 1""")
    a(f"""v_sub_u32 v16, v16, v11
    s_movk_i32 s37, {CAP4}
    v_add_u32 v16, v16, v24
    v_cmp_lt_u32 vcc, s37, v24
    v_add_u32 v17, v16, v8
    v_add_u32 v18, v16, v9
    v_add_u32 v19, v16, v10
    ds_write_b128 v6, v[16:19] offset:{BASE}
    s_cbranch_vccz K2_FITS
    s_cmp_eq_u32 s41, 16
    s_cbranch_scc1 K2_FITS
    s_movk_i32 s41, 16
    s_branch K2_AGAIN""")
    a.label("K2_FITS")
    a(f"v_cmp_lt_u32 vcc, 40, v{VREM}\ns_waitcnt lgkmcnt(0)")
    for j in range(10):
        a(f"ds_read_b32 v{BN+j}, v{BN+j} offset:{BASE}")
    a("s_cbranch_vccz K2_BDONE")
    for j in range(10, 16):
        a(f"ds_read_b32 v{BN+j}, v{BN+j} offset:{BASE}")
    a.label("K2_BDONE")
    bulk(2)
    a("s_lshl_b32 s37, s33, 2\ns_lshr_b32 s43, 0x74206351, s37\ns_and_b32 s43, s43, 7\ns_lshl_b32 s37, s43, 3\ns_add_u32 s37, s37, 7")
    a("v_readlane_b32 s44, v24, s37\ns_waitcnt lgkmcnt(0)")
    for j in range(16):
        a(f"""v_cmpx_lt_u32 vcc, {4*j}, v{VREM}
        v_add_u32 v{BN+j}, v{BN+j}, v{RK+j}""")
        if j >= 4:
            a("s_cbranch_execz K2_SDONE")
        a(f"""v_and_b32 v9, 0x3ff, v{R+j}
        v_lshrrev_b32 v8, 5, v{R+j}
        v_lshl_add_u32 v9, v9, 5, v{VCB}
        ds_write2st64_b32 v{BN+j}, v8, v9 offset0:{LSD//256} offset1:{LEA//256}""")
    a.label("K2_SDONE")
    a(f"""s_mov_b64 exec, -1
    v_min_u32 v8, 64, v{VREM}
    v_add_u32 v{VCUR}, v{VCUR}, v8
    s_mul_i32 s49, s43, {GSTR}
    s_add_u32 s45, s44, 127
    s_lshr_b32 s45, s45, 7
    s_sub_u32 s59, s44, 4
    s_bfe_u32 s59, s59, 0x10006
    s_add_u32 s37, s49, s44
    v_lshl_add_u32 v8, v2, 2, s37
    v_mov_b32 v9, 0x1e0
    v_lshrrev_b32 v10, 4, v2
    v_and_b32 v11, 15, v2
    s_add_u32 s37, s49, {LSD}
    v_lshl_add_u32 v{PSRC}, v10, 4, s37
    v_and_b32 v{PD}, 0xfc, v2
    v_add_u32 v{PD}, s37, v{PD}
    s_add_u32 s37, s49, {LEA}
    v_lshl_add_u32 v{PG}, v11, 2, s37
    s_mov_b64 exec, s[50:51]
    v_subrev_u32 v{PG}, {LEA-LSD}, v{PG}
    s_mov_b64 exec, -1
    s_sub_u32 s60, s45, 1
    s_cmp_eq_u32 s59, 0
    s_cselect_b32 s60, s60, -1""")
    stamp(a, opt, 4, 1)
    a("s_waitcnt vmcnt(0) lgkmcnt(0)\ns_barrier")
    stamp(a, opt, 7, 1)
    if opt.get("prio"):
        a("s_setprio 3")
    if opt.get("prio") == 2:
        a(f"""s_and_b32 s37, s33, 3
        s_lshl_b32 s37, s37, 2
        s_bitcmp1_b32 s33, 2
        s_cselect_b32 s38, 32, 0
        s_add_u32 s37, s37, {PROG}
        s_add_u32 s37, s37, s38
        v_mov_b32 v{VT0}, s37""")
    a(f"""s_mov_b32 exec_hi, 0
    ds_write_b32 v8, v9 offset:{LSD}
    ds_write_b32 v8, v4 offset:{LEA}
    s_mov_b32 exec_hi, -1""")
    a("s_cmp_lt_u32 0, s45")
    enable_srds(a, opt)
    idx_reads(a, 0, 0)
    idx_reads(a, 1, 1)
    a("s_waitcnt lgkmcnt(3)")
    addr0, masked0, loads0 = issue_parts(0)
    es = opt.get("easplit", 0)
    if es:
        seq = addr0 + [masked0[i] for i in (0, 1, 3, 4, 6)] + loads0[:4 * es] + [masked0[i] for i in (0, 2, 3, 5, 6)] + loads0[4 * es:]
    else:
        seq = addr0 + masked0 + loads0
    for x in seq:
        a(x)
    stamp(a, opt, 2, 1)
    a("s_cmp_eq_u32 s42, 0\ns_cbranch_scc1 K2_NOINIT")
    XA, WB, ND = 64, 80, 4
    a(f"""s_mul_i32 s52, s43, 49
    s_add_u32 s52, s52, 2
    s_lshr_b32 s52, s52, 2
    v_and_b32 v114, 63, v{VTID}
    v_and_b32 v118, 15, v114
    v_lshrrev_b32 v119, 4, v114
    v_add_u32 v100, s52, v118
    v_xor_b32 v101, v119, v100
    v_and_b32 v101, 15, v101
    v_lshlrev_b32 v101, 4, v101
    v_lshl_add_u32 v100, v100, 8, v101
    v_lshlrev_b32 v114, 4, v114
    v_add_u32 v114, {WFL}, v114""")
    for s in range(4):
        if s:
            a(f"v_xor_b32 v101, {s*64}, v100")
        a(f"ds_read_b128 {q4(XA+4*s)}, v{101 if s else 100} offset:{XR}")
    ring = [80, 84, 88, 92, 108, 120, 124, GA + 8, GA + 12] + [BOP + 4 * k for k in range(7)]
    DEPTH = opt.get("gdepth", 13)
    side = [f"s_lshl_b32 s37, s33, 12", f"s_add_u32 s37, s37, {XAL}",
            f"v_lshl_add_u32 v115, v118, 5, s37", f"v_lshl_add_u32 v115, v119, 3, v115",
            f"s_sub_u32 s37, s37, {32+CFL}", f"v_lshlrev_b32 v117, 5, v118", f"v_lshl_add_u32 v117, v119, 4, v117",
            f"v_add_u32 v117, {CFL}, v117",
            f"s_mov_b64 exec, s[50:51]\nv_add_u32 v117, s37, v117\ns_mov_b64 exec, -1\ns_nop 1",
            f"s_mov_b32 s38, {NEG_LOG2E}"]
    lds_ops = []
    for f in range(64 + DEPTH):
        if f >= DEPTH:
            ff = f - DEPTH
            mat, b, s = ff >> 5, (ff >> 2) & 7, ff & 3
            d = (ACC if mat else P) + 4 * b
            younger = len(lds_ops) - 1 - lds_ops.index(("r", ff))
            a(f"s_waitcnt lgkmcnt({min(younger, 15)})")
            a(mf16(d, XA + 4 * s, ring[ff % len(ring)], "0" if s == 0 else q4(d)))
            if ff < len(side):
                a(side[ff])
            if ff >= 36 and ff < 60:
                pb, k = (ff - 36) // 3, (ff - 36) % 3
                e = P + 4 * pb
                if k == 0:
                    a(f"v_mul_f32 v{e}, s38, v{e}\nv_mul_f32 v{e+1}, s38, v{e+1}")
                elif k == 1:
                    a(f"v_mul_f32 v{e+2}, s38, v{e+2}\nv_mul_f32 v{e+3}, s38, v{e+3}")
                else:
                    a(f"v_cvt_pk_bf16_f32 v{e}, v{e}, v{e+1}\nv_cvt_pk_bf16_f32 v{e+1}, v{e+2}, v{e+3}")
                    a(f"ds_write_b64 v115, v[{e}:{e+1}] offset:{pb*512}")
                    lds_ops.append(("w", pb))
        if f < 64:
            a(f"ds_read_b128 {q4(ring[f % len(ring)])}, v114 offset:{f*1024}")
            lds_ops.append(("r", f))
    a("s_nop 3")
    for b in range(8):
        a(f"ds_read_b128 {q4(BOP+4*b)}, v117 offset:{b*512}")
    stamp(a, opt, 3, 1)
    a.label("K2_NOINIT")
    if opt.get("prio") == 2:
        a("s_setprio 1")
    stamp(a, opt, 8, 1)
    a("s_mov_b32 s46, 0\ns_cmp_eq_u32 s45, 0\ns_cbranch_scc1 K2_TDONE")
    a(f"s_waitcnt vmcnt({17 if opt.get('easplit') else 16}) lgkmcnt(0)")
    for t in range(4):
        a(mf16(P + 4 * t, GA, BOP + 4 * t, "0"))
    a("s_nop 7")
    a(".p2align 6")
    a.label("K2_LOOP")
    if opt.get("prio") == 1:
        a("""s_cmp_ge_u32 s46, 2
        s_cbranch_scc0 K2_PR
        s_setprio 2
        s_cmp_ge_u32 s46, 4
        s_cbranch_scc0 K2_PR
        s_setprio 1
        s_cmp_ge_u32 s46, 6
        s_cbranch_scc0 K2_PR
        s_setprio 0""")
        a.label("K2_PR")
    a("s_cmp_eq_u32 s46, s60\ns_cbranch_scc1 K2_HALF0")
    tile(a, opt, 0, 0)
    a("s_cmp_ge_u32 s46, s45\ns_cbranch_scc1 K2_TDONE")
    a("s_cmp_eq_u32 s46, s60\ns_cbranch_scc1 K2_HALF1")
    tile(a, opt, 1, 1)
    a(f"""v_add_u32 v{PSRC}, 256, v{PSRC}
    v_add_u32 v{PG}, 256, v{PG}
    v_add_u32 v{PD}, 256, v{PD}
    s_cmp_lt_u32 s46, s45
    s_cbranch_scc1 K2_LOOP
    s_branch K2_TDONE""")
    a.label("K2_HALF0")
    tile(a, opt, 0, 0, half=True)
    a("s_branch K2_TDONE")
    a.label("K2_HALF1")
    tile(a, opt, 1, 1, half=True)
    a.label("K2_TDONE")
    stamp(a, opt, 9, 1)
    a("""s_waitcnt vmcnt(0) lgkmcnt(0)
    s_mov_b32 s42, 0
    s_cmp_lg_u32 s48, 0
    s_cbranch_scc1 K2_AGAIN
    s_add_u32 s40, s40, s41
    s_cmp_ge_u32 s40, 500
    s_cbranch_scc1 K2_EPI""")
    a.label("K2_AGAIN")
    a(f"""s_waitcnt lgkmcnt(0)
    s_barrier
    v_and_b32 v2, 63, v{VTID}
    v_lshlrev_b32 v3, 4, v2
    v_mov_b32 v4, 0
    v_mov_b32 v5, 0
    v_mov_b32 v6, 0
    v_mov_b32 v7, 0
    ds_write_b128 v3, v[4:7] offset:{HIST}
    ds_write_b32 v4, v4 offset:{FLAG}
    s_waitcnt lgkmcnt(0)
    s_barrier
    s_branch K2_ROUND""")
    a.label("K2_EPI")
    a(f"""s_mul_i32 s53, s43, 49
    s_add_u32 s53, s53, 51
    s_lshr_b32 s53, s53, 2
    s_sub_u32 s53, s53, s52
    v_and_b32 v2, 63, v{VTID}
    v_lshrrev_b32 v3, 4, v2
    v_lshlrev_b32 v3, 2, v3
    v_and_b32 v4, 15, v2
    v_add_u32 v5, s52, v3
    v_lshlrev_b32 v5, 8, v5
    v_lshl_add_u32 v5, v4, 3, v5
    s_mov_b32 s36, {NEG_LOG2E}
    s_mov_b32 s37, {NEG_LOG2E}
    v_mov_b32 v6, 0x7ffffff0""")
    for r in range(4):
        a(f"""v_add_u32 v7, {r}, v3
        v_cmp_gt_u32 vcc, s53, v7
        s_nop 1
        v_cndmask_b32 v{8+r}, v6, v5, vcc""")
    for hh in range(2):
        lo = 16 * hh
        for i in range(lo, lo + 16, 2):
            a(f"v_pk_mul_f32 v[{16+i}:{17+i}], v[{ACC+i}:{ACC+i+1}], s[36:37]")
        for i in range(lo, lo + 16):
            a(f"v_exp_f32 v{16+i}, v{16+i}")
        for i in range(lo, lo + 16, 2):
            a(f"v_pk_add_f32 v[{16+i}:{17+i}], v[{16+i}:{17+i}], 1.0 op_sel_hi:[1,0]")
        for i in range(lo, lo + 16):
            a(f"v_rcp_f32 v{16+i}, v{16+i}")
        for i in range(lo, lo + 16, 2):
            a(f"v_pk_mul_f32 v[{16+i}:{17+i}], v[{16+i}:{17+i}], v[{ACC+i}:{ACC+i+1}]")
        for r in range(4):
            o = 48 + (r * 2 + hh) * 2
            y = lambda t: 16 + (4 * hh + t) * 4 + r
            a(f"v_cvt_pk_bf16_f32 v{o}, v{y(0)}, v{y(1)}\nv_cvt_pk_bf16_f32 v{o+1}, v{y(2)}, v{y(3)}")
            a(f"buffer_store_dwordx2 v[{o}:{o+1}], v{8+r}, s[28:31], 0 offen offset:{r*256+hh*128}")
    stamp(a, opt, 10, 1)
    dbg(a, opt, 3, False, 1, True)
    if opt.get("stamp"):
        stamp_flush(a, opt, 11, 1, 10, 11, 33)
    a("s_endpgm")
    a.label("K2_END")
    a("s_endpgm")
    return a, K2_LDS


HEADER = """; Edge-gated message passing layer, two launches.
;       (x@V as rounded high half | -log2e * x@B as f16 low half) per node; weight fragments.
;   k2: one workgroup per bucket; sorts its records by 12/13-node group and source range, then per
"""


def kd(name, nv, ns):
    return f""".p2align 6
.amdhsa_kernel {name}
  .amdhsa_next_free_vgpr {nv}
  .amdhsa_next_free_sgpr {ns}
  .amdhsa_accum_offset {(nv+3)//4*4}
  .amdhsa_group_segment_fixed_size 0
  .amdhsa_kernarg_size 80
  .amdhsa_user_sgpr_count 2
  .amdhsa_user_sgpr_kernarg_segment_ptr 1
  .amdhsa_system_sgpr_workgroup_id_x 1
.end_amdhsa_kernel
"""


def build(opt):
    k1, l1 = gen_k1(opt)
    k2, l2 = gen_k2(opt)
    flags = {0: "", 1: " sc1", 2: " sc0 sc1", 3: " nt", 4: " sc1 nt", 5: " sc0 sc1 nt"}
    if opt.get("ld2"):
        k2.lines = [ln + flags[opt["ld2"]] if ln.startswith("buffer_load_dwordx4") and ("s[12:15]" in ln or "s[16:19]" in ln) else ln for ln in k2.lines]
    for k, key in ((k1, "st1"), (k2, "st2")):
        k.lines = [ln + flags[opt.get(key, 0)] if ln.startswith("buffer_store") else ln for ln in k.lines]
    for nm, k in (("k1", k1), ("k2", k2)):
        for pr in lint(k.lines):
            print(f"LINT {nm}: need {pr[2]} have {pr[3]}: {pr[4]}  ->  {pr[5]}", file=sys.stderr)
    s = HEADER
    s += f"; @launch kernel=k1_kernel grid=(256,1,1) block=(512,1,1) lds={l1}\n"
    s += f"; @launch kernel=k2_kernel grid=(256,1,1) block=(512,1,1) lds={l2}\n"
    s += '.amdgcn_target "amdgcn-amd-amdhsa--gfx950"\n.text\n'
    for nm, k in (("k1_kernel", k1), ("k2_kernel", k2)):
        s += f".globl {nm}\n.p2align 8\n.type {nm},@function\n" + k.text()
    s += "; keeps the code-touching loads above inside this section\n.fill 1280, 4, 0xbf810000\n"
    s += '.section .rodata,"a"\n' + kd("k1_kernel", 224, 102) + kd("k2_kernel", 256, 102)
    return s


if __name__ == "__main__":
    opt = {}
    out = f"cdna_kernels/{NAME}.s"
    for arg in sys.argv[1:]:
        if arg.startswith("-o"):
            out = arg[2:]
        else:
            k, _, v = arg.partition("=")
            opt[k] = int(v) if v else 1
    open(out, "w").write(build(opt))
    print("wrote", out)
```

```python
import sys
from asmlib import Asm, lint
import gen
from gen import (last_tile, srd, code_touch, weave, mf16, q4, tile, idx_reads, issue_parts, enable_srds, kd,
                 NAME, NEG_LOG2E, TAB_SZ, REC, OFF, WF, CF, EAS, WS_USED, STAMP,
                 HIST, BASE, FLAG, PROG, TG, TS, GSTR, LSD, LEA, CAP4,
                 ACC, BOP, P, Z, GA, SA, VLANE, VGC, VSC, PSRC, PG, PD, VTID, VCUR, VEND, VGM, VT0, VT1)

FLG1, FLG2 = 0x0FA0000, 0x0FA4000
WL, SCR, XAL = 0, 25856, 25856
XL = 65536
SM = 92160
H1, H2, B1, B2, STG, INV = 0, 2048, 2560, 4608, 5120, 11520
EAL = SM + 17920
WFL = SM
CFL = WFL + 65536
JUNK = 161792
CNT = 162816
LDS = 163072
SDW = "dst_sel:DWORD dst_unused:UNUSED_PAD"
SPIN = 1 << 19
PX, PE, PS, PDst, PU, PV, PGW, PO, PDBG, PWS = 64, 66, 68, 70, 72, 74, 76, 78, 80, 82


def stamp(a, opt, idx):
    if opt.get("stamp") and idx in opt["stamps"]:
        k = opt["stamps"].index(idx)
        a(f"s_memrealtime s[{84+2*k}:{85+2*k}]")


def lds_add(a, word, vt):
    a(f"""v_mov_b32 v{vt}, {CNT}
    v_mov_b32 v{vt+1}, 1
    s_mov_b64 exec, 1
    ds_add_u32 v{vt}, v{vt+1} offset:{word}
    s_mov_b64 exec, -1""")


def lds_arrive(a, word, last, vt):
    a(f"""v_mov_b32 v{vt}, {CNT}
    v_mov_b32 v{vt+1}, 1
    s_mov_b64 exec, 1
    ds_add_rtn_u32 v{vt+1}, v{vt}, v{vt+1} offset:{word}
    s_mov_b64 exec, -1
    s_waitcnt lgkmcnt(0)
    v_readfirstlane_b32 s37, v{vt+1}
    s_cmp_eq_u32 s37, {last}""")


def lds_wait(a, word, target, tag, vt):
    a(f"v_mov_b32 v{vt}, {CNT}\ns_mov_b32 s38, {SPIN}")
    a.label(tag)
    a(f"""ds_read_b32 v{vt+1}, v{vt} offset:{word}
    s_waitcnt lgkmcnt(0)
    v_readfirstlane_b32 s37, v{vt+1}
    s_cmp_ge_u32 s37, {target}
    s_cbranch_scc1 {tag}_OK
    s_sleep 1
    s_sub_u32 s38, s38, 1
    s_cmp_lg_u32 s38, 0
    s_cbranch_scc1 {tag}""")
    a.label(tag + "_OK")


def signal(a, flg, vt):
    a(f"""s_lshl_b32 s37, s2, 4
    s_add_u32 s37, s37, {flg}
    v_mov_b32 v{vt}, 0
    v_mov_b32 v{vt+1}, s61
    s_mov_b64 exec, 1
    buffer_store_dword v{vt+1}, v{vt}, s[20:23], s37 offen sc1
    s_mov_b64 exec, -1""")


def poll(a, opt, flg, tag, vt):
    agg = opt.get("agg", 8) if flg == FLG1 else opt.get("agg2", 0)
    a(f"""v_and_b32 v{vt}, 63, v{VTID}
    v_lshlrev_b32 v{vt}, 4, v{vt}
    s_mov_b32 s38, {SPIN}
    s_mov_b32 s39, {flg}""")
    if agg:
        a(f"s_cmp_ge_u32 s2, {agg}\ns_cbranch_scc1 {tag}_L")
    a.label(tag)
    for k in range(4):
        a(f"buffer_load_dword v{vt+1+k}, v{vt}, s[20:23], s39 offen offset:{k*1024} sc1")
    a("s_waitcnt vmcnt(0)")
    for k in range(4):
        a(f"v_xor_b32 v{vt+1+k}, s61, v{vt+1+k}")
    a(f"""v_or3_b32 v{vt+1}, v{vt+1}, v{vt+2}, v{vt+3}
    v_or_b32 v{vt+1}, v{vt+1}, v{vt+4}
    v_cmp_ne_u32 vcc, 0, v{vt+1}
    s_cbranch_vccz {tag}_A
    s_sleep {opt.get("psl", 2)}
    s_sub_u32 s38, s38, 1
    s_cmp_lg_u32 s38, 0
    s_cbranch_scc1 {tag}""")
    a.label(tag + "_A")
    if agg:
        a(f"""s_lshl_b32 s39, s2, 8
        s_add_u32 s39, s39, {flg+4096}
        v_mov_b32 v{vt}, 0
        v_mov_b32 v{vt+1}, s61
        s_mov_b64 exec, 1
        buffer_store_dword v{vt+1}, v{vt}, s[20:23], s39 offen sc1
        s_mov_b64 exec, -1
        s_branch {tag}_OK""")
        a.label(tag + "_L")
        a(f"""s_and_b32 s39, s2, {agg-1}
        s_lshl_b32 s39, s39, 8
        s_add_u32 s39, s39, {flg+4096}
        v_mov_b32 v{vt}, 0
        s_mov_b64 exec, 1""")
        a.label(tag + "_M")
        a(f"""buffer_load_dword v{vt+1}, v{vt}, s[20:23], s39 offen sc1
        s_waitcnt vmcnt(0)
        v_cmp_ne_u32 vcc, s61, v{vt+1}
        s_cbranch_vccz {tag}_N
        s_sleep {opt.get("psl2", 4)}
        s_sub_u32 s38, s38, 1
        s_cmp_lg_u32 s38, 0
        s_cbranch_scc1 {tag}_M""")
        a.label(tag + "_N")
        a("s_mov_b64 exec, -1")
    a.label(tag + "_OK")


def gen_fused(opt):
    a = Asm()
    nt = lambda bit: " nt" if opt.get("nt", 0) & bit else ""
    a.label(NAME + "_kernel")
    a("s_cmp_ge_u32 s2, 256\ns_cbranch_scc1 K_END")
    stamp(a, opt, 0)
    a(f"""s_load_dwordx16 s[64:79], s[0:1], 0
    s_load_dwordx4 s[80:83], s[0:1], 64
    v_mov_b32 v{VTID}, v0
    v_lshrrev_b32 v1, 6, v0
    v_and_b32 v2, 63, v0
    v_readfirstlane_b32 s33, v1
    s_and_b32 s3, s2, 7
    s_lshl_b32 s3, s3, 5
    s_lshr_b32 s32, s2, 3
    s_add_u32 s32, s32, s3
    v_lshrrev_b32 v4, 4, v2
    s_mov_b32 s40, 0
    s_movk_i32 s41, 256
    s_mov_b32 s42, 1
    s_mov_b32 s58, 1
    s_mov_b32 s62, 4
    v_lshlrev_b32 v8, 2, v0
    v_add_u32 v8, {SM}, v8
    v_mov_b32 v9, 0
    ds_write_b32 v8, v9
    ds_write_b32 v8, v9 offset:512
    v_lshlrev_b32 v8, 2, v2
    v_add_u32 v8, {CNT}, v8
    ds_write_b32 v8, v9
    s_mul_i32 s36, s32, 25088
    s_cmp_ge_u32 s33, 4
    s_cbranch_scc1 K_G
""")
    if opt.get("cts", 0):
        a("s_cmp_lg_u32 s33, 3\ns_cbranch_scc1 K_NOCT\ns_and_b32 s37, s2, 0xf8\nv_add_u32 v241, s37, v2\ns_mov_b64 exec, 0xff")
        code_touch(a, "K_CT0", NAME + "_kernel", 1, 34, 241, 242, 243)
        a("s_mov_b64 exec, -1")
    else:
        a("s_cmp_lt_u32 s33, 2\ns_cbranch_scc1 K_NOCT\nv_and_b32 v241, 127, v0")
        code_touch(a, "K_CT0", NAME + "_kernel", 1, 34, 241, 242, 243)
        a("v_add_u32 v242, 16384, v242\nglobal_load_dword v243, v242, s[34:35]")
    a.label("K_NOCT")

    a(f"""s_mul_i32 s35, s33, 3200
    v_lshl_add_u32 v4, v2, 4, s35
    s_lshl_b32 s37, s33, 10
    s_add_u32 s37, s37, {SM}
    v_mov_b32 v5, s37
    s_lshl_b32 s37, s33, 8
    s_add_u32 s37, s37, {SM}
    v_mov_b32 v7, s37
    v_mov_b32 v6, 4
    v_cmp_gt_u32 s[56:57], 50, v2
    s_mul_i32 s39, s2, 6400
    s_waitcnt lgkmcnt(0)""")
    srd(a, 20, PWS, PWS + 1, WS_USED)
    a("""s_cmp_eq_u32 s33, 3
    s_cbranch_scc1 K_S3
    s_cmp_ge_u32 s2, 250
    s_cbranch_scc1 K_PREP
    s_cmp_eq_u32 s33, 2
    s_cbranch_scc1 K_S2""")
    if opt.get("sp", 1):
        a("s_setprio 3")
    D, S_, BA, RK1, BB, RK2 = 10, 26, 42, 58, 74, 90
    srd(a, 24, PDst, PDst + 1, 6400, add="s39")
    srd(a, 4, PS, PS + 1, 6400, add="s39")
    a("s_mov_b64 exec, s[56:57]")
    for m in range(4):
        a(f"buffer_load_dwordx4 {q4(D+4*m)}, v4, s[24:27], 0 offen offset:{800*m}{nt(1)}")
        a(f"buffer_load_dwordx4 {q4(S_+4*m)}, v4, s[4:7], 0 offen offset:{800*m}{nt(1)}")
    a("s_mov_b64 exec, -1\ns_barrier\ns_branch K_S01")
    a.lines.append("@@BODY")
    a.label("K_S01")
    a(f"s_add_u32 s39, s39, {REC}")
    srd(a, 8, PWS, PWS + 1, 6400, add="s39")
    a(f"s_lshl_b32 s39, s2, 11\ns_add_u32 s39, s39, {OFF}")
    srd(a, 28, PWS, PWS + 1, 2048, add="s39")
    a("s_movk_i32 s39, 5352\nv_mov_b32 v109, 1338\ns_mov_b64 exec, s[56:57]")
    for k in range(16):
        if k % 4 == 0:
            a(f"s_waitcnt vmcnt({6-2*(k//4)})")
        if k == 0:
            stamp(a, opt, 1)
        d, s_, b, rk, b2, rk2, dl, g, t = D + k, S_ + k, BA + k, RK1 + k, BB + k, RK2 + k, 106, 107, 108
        a(f"""v_mul_u32_u24 v{b}, 5350, v{d}
        v_lshrrev_b32 v{b}, 19, v{b}
        v_lshrrev_b32 v{t}, 12, v{s_}
        v_and_b32 v{b2}, 0xe0, v{b}
        v_mul_u32_u24 v{dl}, 98, v{b}
        v_lshl_add_u32 v{b}, v{b}, 2, v5
        ds_add_rtn_u32 v{rk}, v{b}, v6 offset:{H1}
        v_lshl_add_u32 v{b2}, v{t}, 2, v{b2}
        v_add_u32 v{b2}, v{b2}, v7
        ds_add_rtn_u32 v{rk2}, v{b2}, v6 offset:{H2}
        v_sub_u32 v{dl}, v{d}, v{dl}
        v_mad_u32_u24 v{g}, v{dl}, s39, v109
        v_lshrrev_b32 v{g}, 16, v{g}
        v_mad_u32_u24 v{t}, v{g}, 49, 2
        v_lshrrev_b32 v{t}, 2, v{t}
        v_sub_u32 v{dl}, v{dl}, v{t}
        v_lshlrev_b32 v{g}, 29, v{g}
        v_lshl_or_b32 v{g}, v{s_}, 14, v{g}
        v_lshl_or_b32 v{s_}, v{dl}, 10, v{g}""")
    a(f"""s_mov_b64 exec, -1
    v_lshl_add_u32 v10, v2, 4, v5
    v_lshl_add_u32 v11, v2, 2, v7
    ds_read_b128 v[12:15], v10 offset:{H1}
    ds_read_b32 v20, v11 offset:{H2}
    s_waitcnt lgkmcnt(0)""")
    stamp(a, opt, 2)
    a(f"""v_add_u32 v13, v13, v12
    v_add_u32 v14, v14, v13
    v_add_u32 v15, v15, v14
    v_mov_b32 v16, v15
    v_mov_b32 v21, v20
    s_nop 0""")
    for m in ("row_shr:1 row_mask:0xf", "row_shr:2 row_mask:0xf", "row_shr:4 row_mask:0xf", "row_shr:8 row_mask:0xf",
              "row_bcast:15 row_mask:0xa", "row_bcast:31 row_mask:0xc"):
        a(f"v_add_u32_dpp v16, v16, v16 {m} bank_mask:0xf\nv_add_u32_dpp v21, v21, v21 {m} bank_mask:0xf\ns_nop 0")
    a(f"""v_sub_u32 v16, v16, v15
    v_sub_u32 v21, v21, v20
    v_add_u32 v17, v16, v12
    v_add_u32 v18, v16, v13
    v_add_u32 v19, v16, v14
    ds_write_b128 v10, v[16:19] offset:{H1}
    ds_write_b32 v11, v21 offset:{H2}
    s_mov_b64 exec, s[56:57]""")
    for k in range(16):
        a(f"ds_read_b32 v{BA+k}, v{BA+k} offset:{H1}\nds_read_b32 v{BB+k}, v{BB+k} offset:{H2}")
    a(f"""s_mov_b64 exec, -1
    v_add_u32 v25, v16, v15
    v_lshl_or_b32 v22, v17, 16, v16
    v_lshl_or_b32 v23, v18, 16, v17
    v_lshl_or_b32 v24, v19, 16, v18
    v_lshl_or_b32 v25, v25, 16, v19
    v_subrev_u32 v10, {SM}, v10
    s_add_u32 s35, s35, {SM}
    v_lshlrev_b32 v106, 3, v4
    v_add_u32 v110, {SM}, v4
    s_mov_b64 exec, s[56:57]
    s_waitcnt lgkmcnt(0)""")
    for k in range(16):
        a(f"""v_add_u32 v{BB+k}, v{BB+k}, v{RK2+k}
        v_add3_u32 v{BA+k}, v{BA+k}, v{RK1+k}, s35
        v_lshrrev_b32 v107, 2, v{BB+k}
        v_add_u32 v{BB+k}, s35, v{BB+k}
        v_or_b32 v{S_+k}, v{S_+k}, v107
        v_add_u32 v108, {EAL+32*(k&3)+6400*(k>>2)}, v106
        ds_write_b32 v{BA+k}, v{S_+k} offset:{STG}
        ds_write_b32 v{BB+k}, v108 offset:{INV}""")
    for m in range(4):
        a(f"ds_read_b128 {q4(112+4*m) if m < 2 else q4(12+4*(m-2))}, v110 offset:{STG+800*m}")
    a(f"v_mov_b32 v30, {CNT}\nv_mov_b32 v31, 1\ns_mov_b64 exec, 1\nds_add_u32 v30, v31 offset:12\ns_mov_b64 exec, s[56:57]")
    for m in range(4):
        a(f"s_waitcnt lgkmcnt({4-m})")
        a(f"buffer_store_dwordx4 {q4(112+4*m) if m < 2 else q4(12+4*(m-2))}, v4, s[8:11], 0 offen offset:{800*m} sc1")
    a("s_mov_b64 exec, -1\nbuffer_store_dwordx4 v[22:25], v10, s[28:31], 0 offen sc1")
    stamp(a, opt, 3)
    a("s_mov_b32 s39, 1")
    a.label("K_PUB")
    lds_wait(a, 20, 1, "K_NONCE", 30)
    a("s_mov_b32 s61, s37\ns_waitcnt vmcnt(0)")
    lds_arrive(a, 0, "s39", 30)
    a("s_cbranch_scc0 K_W1")
    signal(a, FLG1, 30)
    a("s_waitcnt vmcnt(0)")
    lds_add(a, 36, 30)
    stamp(a, opt, 4)
    a("s_branch K_W1")

    a.lines.append("@@S2")
    a.label("K_S2")
    if opt.get("wt", 1):
        srd(a, 24, PGW, PGW + 1, 32768, add=32768)
        a(f"""s_bitcmp1_b32 s2, 7
        s_cselect_b32 s24, s{PV}, s24
        s_cselect_b32 s25, s{PV+1}, s25
        s_bfe_u32 s37, s2, 0x40003
        s_lshl_b32 s37, s37, 11
        v_lshlrev_b32 v22, 7, v2
        s_mov_b64 exec, 0xffff
        buffer_load_dword v23, v22, s[24:27], s37 offen
        s_mov_b64 exec, -1""")
    a("s_barrier\ns_branch K_S2B")
    a.lines.append("@@S2B")
    a.label("K_S2B")
    eaw = opt.get("eaw", 5)
    nsplit = opt.get("split", 25)

    def ea_part(lo, hi, tag):
        a("s_mul_i32 s39, s2, 51200")
        srd(a, 8, PE, PE + 1, 51200, add="s39")
        a("v_lshlrev_b32 v22, 4, v2")
        if eaw != 6:
            lds_wait(a, {0: 24, 1: 32, 5: 40}[eaw], 4, tag, 30)
        a("s_nop 1")
        n = lo
        while n < hi:
            a(f"s_mov_b32 m0, {EAL+n*1024}\ns_mov_b32 s37, {n*1024}")
            for k in range(min(4, hi - n)):
                a(f"buffer_load_dwordx4 v22, s[8:11], s37 offen offset:{k*1024}{nt(2)} lds")
            n += 4

    ea_part(0, nsplit, "K_WX2")
    stamp(a, opt, 2)
    a("s_waitcnt vmcnt(0)")
    lds_add(a, 12, 30)
    stamp(a, opt, 3)
    a("s_branch K_W1")

    a.lines.append("@@S3")
    a.label("K_S3")
    a(f"""s_cmp_lg_u32 s2, 0
    s_cbranch_scc1 K_NONONCE
    s_memrealtime s[44:45]
    s_waitcnt lgkmcnt(0)
    s_or_b32 s44, s44, 1
    v_mov_b32 v8, s44
    s_mov_b64 exec, 1
    global_store_dword v9, v8, s[{PDBG}:{PDBG+1}] sc1
    s_mov_b64 exec, -1""")
    a.label("K_NONONCE")
    a("s_barrier\ns_branch K_S3B")
    a.lines.append("@@S3B")
    a.label("K_S3B")
    a(f"""    v_bfe_u32 v24, v2, 1, 4
    v_and_b32 v21, 1, v2
    v_lshlrev_b32 v21, 2, v21
    v_and_b32 v26, 1, v24
    v_lshlrev_b32 v26, 4, v26
    v_mov_b32 v27, 0x3f80
    v_lshlrev_b32 v27, v26, v27
    v_lshrrev_b32 v24, 1, v24
    v_sub_u32 v24, v24, v21
    v_lshlrev_b32 v192, 4, v2
    v_mov_b32 v196, 0
    v_mov_b32 v197, 0
    v_mov_b32 v198, 0
    v_mov_b32 v199, 0""")
    for k in range(4):
        a(f"v_cmp_eq_u32 vcc, {k}, v24\ns_nop 1\nv_cndmask_b32 v{200+k}, 0, v27, vcc")
    a(f"s_mov_b32 s39, {SPIN}")
    a.label("K_N3")
    a(f"""global_load_dword v120, v9, s[{PDBG}:{PDBG+1}] sc1
    s_waitcnt vmcnt(0)
    v_readfirstlane_b32 s61, v120
    s_cmp_lg_u32 s61, 0
    s_cbranch_scc1 K_N3OK
    s_sleep 2
    s_sub_u32 s39, s39, 1
    s_cmp_lg_u32 s39, 0
    s_cbranch_scc1 K_N3""")
    a.label("K_N3OK")
    a(f"v_mov_b32 v30, {CNT}\nds_write_b32 v30, v120 offset:20")
    if nsplit < 50:
        a("s_cmp_ge_u32 s2, 250\ns_cbranch_scc1 K_NOEA3")
        ea_part(nsplit, 50, "K_WX3")
        a("s_waitcnt vmcnt(0)")
        a.label("K_NOEA3")
    lds_add(a, 12, 30)
    lds_wait(a, 0, 2, "K_WA3", 30)
    stamp(a, opt, 4)
    poll(a, opt, FLG1, "K_P1", 30)
    a(f"v_mov_b32 v30, {CNT}\nv_mov_b32 v31, 1\nds_write_b32 v30, v31 offset:4\ns_branch K_GO1")
    a.label("K_W1")
    a("s_setprio 0")
    lds_wait(a, 4, 1, "K_W1L", 30)
    a.label("K_GO1")
    if opt.get("lp"):
        a(f"s_setprio {opt['lp']}")
    stamp(a, opt, 5)
    a(f"""v_lshlrev_b32 v6, 10, v{VTID}
    s_lshl_b32 s34, s32, 2
    s_add_u32 s34, s34, {OFF}
    s_add_u32 s35, s34, {256*1024}
    v_mov_b32 v8, 0
    s_movk_i32 s37, 244
    v_cmp_gt_u32 vcc, s37, v{VTID}
    buffer_load_dword v7, v6, s[20:23], s34 offen sc1
    s_mov_b64 exec, vcc
    buffer_load_dword v8, v6, s[20:23], s35 offen sc1
    s_mov_b64 exec, -1
    s_mov_b32 s37, 0xffff
    s_waitcnt vmcnt(0)
    v_lshlrev_b32 v{VCUR}, 16, v8
    v_bfi_b32 v{VCUR}, s37, v7, v{VCUR}
    v_lshrrev_b32 v{VEND}, 16, v7
    v_bfi_b32 v{VEND}, s37, v{VEND}, v8""")
    R, RK, BN = 0, 32, 64
    VREM, VFOUR, VCB, VADR, T8, T9 = 96, 98, 99, 101, 103, 104
    t = lambda n: 190 + n
    a.label("K2_ROUND")
    a("s_cmp_ge_u32 s33, 4\ns_cbranch_scc1 K2_JOIN")
    a(f"""v_subrev_u32 v{T8}, s40, v{VTID}
    v_cmp_gt_u32 vcc, s41, v{T8}
    v_sub_u32_sdwa v{VREM}, v{VEND}, v{VCUR} {SDW} src0_sel:WORD_0 src1_sel:WORD_0
    v_sub_u32_sdwa v{VREM+1}, v{VEND}, v{VCUR} {SDW} src0_sel:WORD_1 src1_sel:WORD_1
    v_mul_u32_u24 v{T9}, 3200, v{VTID}
    v_cndmask_b32 v{VREM}, 0, v{VREM}, vcc
    v_cndmask_b32 v{VREM+1}, 0, v{VREM+1}, vcc
    v_add_u32_sdwa v{VADR}, v{T9}, v{VCUR} {SDW} src0_sel:DWORD src1_sel:WORD_0
    v_add_u32_sdwa v{VADR+1}, v{T9}, v{VCUR} {SDW} src0_sel:DWORD src1_sel:WORD_1
    s_mov_b32 s37, {REC}
    s_mov_b32 s38, {REC+256*3200}""")
    for m in range(4):
        for u in range(2):
            a(f"""v_cmp_lt_u32 vcc, {16*m}, v{VREM+u}
            s_and_saveexec_b64 s[34:35], vcc
            s_cbranch_execz K2_RL{m}{u}
            buffer_load_dwordx4 {q4(R+16*u+4*m)}, v{VADR+u}, s[20:23], s{37+u} offen offset:{16*m} sc1""")
            a.label(f"K2_RL{m}{u}")
            a("s_mov_b64 exec, s[34:35]")
    a("s_cmp_eq_u32 s58, 0\ns_cbranch_scc1 K2_TOK\ns_cmp_lg_u32 s33, 3\ns_cbranch_scc1 K2_TW")
    lds_wait(a, 28, 4, "K_WD3", T8)
    a(f"ds_write_b128 v{t(2)}, {q4(t(6))} offset:{HIST}\nds_write_b128 v{t(2)}, {q4(t(10))} offset:{TG}")
    a(f"s_mov_b64 exec, 0xffff\nds_write_b128 v{t(2)}, {q4(t(6))} offset:{FLAG}\ns_mov_b64 exec, -1")
    lds_add(a, 44, T8)
    a.label("K2_TW")
    lds_wait(a, 44, 1, "K_WT", T8)
    a.label("K2_TOK")
    a(f"""v_mov_b32 v{VFOUR}, 4
    v_mul_u32_u24 v{VCB}, 25600, v{VTID}
    s_movk_i32 s39, 2
    v_add_u32 v{VCB+1}, {256*25600}, v{VCB}
    s_waitcnt vmcnt(0)""")
    stamp(a, opt, 6)
    if opt.get("pre", 0):
        a(f"""s_cmp_eq_u32 s58, 0
        s_cbranch_scc1 K2_NOPRE
        v_and_b32 v{T8}, 63, v{VTID}
        v_lshlrev_b32 v{T8}, 4, v{T8}
        s_lshl_b32 s37, s33, 10
        s_add_u32 s37, s37, {CF}
        buffer_load_dwordx4 {q4(GA)}, v{T8}, s[20:23], s37 offen sc1
        s_lshl_b32 s37, s33, 14""")
        for g4 in range(4):
            a(f"s_add_u32 s38, s37, {WF+g4*4096}")
            for k in range(4):
                a(f"buffer_load_dwordx4 {q4(ACC+16*g4+4*k)}, v{T8}, s[20:23], s38 offen offset:{k*1024} sc1")
        a.label("K2_NOPRE")
    for u in range(2):
        for j in range(16):
            k = 16 * u + j
            a(f"""v_cmpx_lt_u32 vcc, {4*j}, v{VREM+u}
            v_lshlrev_b32_sdwa v{BN+k}, s39, v{R+k} {SDW} src0_sel:DWORD src1_sel:BYTE_3""")
            if j >= 4:
                a(f"s_cbranch_execz K2_CDONE{u}")
            a(f"ds_add_rtn_u32 v{RK+k}, v{BN+k}, v{VFOUR} offset:{HIST}")
        a(f"""v_cmp_lt_u32 vcc, 64, v{VREM+u}
        s_and_b64 exec, exec, vcc
        s_cbranch_scc0 K2_CDONE{u}
        v_mov_b32 v{T8}, 0
        ds_write_b32 v{T8}, v{VFOUR} offset:{FLAG}""")
        a.label(f"K2_CDONE{u}")
        a("s_mov_b64 exec, -1")
    a(f"""v_mov_b32 v{T8}, {CNT}
    v_mov_b32 v{T9}, 1
    v_and_b32 v{t(2)}, 63, v{VTID}
    v_lshrrev_b32 v{t(5)}, 3, v{t(2)}
    v_lshlrev_b32 v{t(4)}, 4, v{t(2)}
    v_mul_u32_u24 v{t(14)}, {GSTR}, v{t(5)}
    v_and_b32 v{t(5)}, 7, v{t(2)}
    v_add_u32 v{t(10)}, -1, v{t(5)}
    v_add_u32 v{t(11)}, -2, v{t(5)}
    v_add_u32 v{t(12)}, -4, v{t(5)}
    v_ashrrev_i32 v{t(10)}, 31, v{t(10)}
    v_ashrrev_i32 v{t(11)}, 31, v{t(11)}
    v_ashrrev_i32 v{t(12)}, 31, v{t(12)}
    s_waitcnt lgkmcnt(0)
    s_mov_b64 exec, 1
    ds_add_u32 v{T8}, v{T9} offset:8
    s_mov_b64 exec, -1""")
    lds_wait(a, 8, "s62", "K2_SS", T8)
    a(f"""s_add_u32 s62, s62, 4
    ds_read_b128 {q4(t(6))}, v{t(4)} offset:{HIST}
    v_max_u32 v{T8}, v{VREM}, v{VREM+1}
    s_waitcnt lgkmcnt(0)
    v_add_u32 v{t(7)}, v{t(7)}, v{t(6)}
    v_add_u32 v{t(8)}, v{t(8)}, v{t(7)}
    v_add_u32 v{t(9)}, v{t(9)}, v{t(8)}
    v_mov_b32 v{t(22)}, v{t(9)}
    s_nop 1""")
    for n, k in enumerate((1, 2, 4)):
        a(f"""v_mov_b32_dpp v{t(13)}, v{t(22)} row_shr:{k} row_mask:0xf bank_mask:0xf
        v_bfi_b32 v{t(13)}, v{t(10+n)}, 0, v{t(13)}
        v_add_u32 v{t(22)}, v{t(22)}, v{t(13)}
        s_nop 1""")
    a(f"""v_sub_u32 v{t(14)}, v{t(14)}, v{t(9)}
    s_movk_i32 s37, {CAP4}
    v_add_u32 v{t(14)}, v{t(14)}, v{t(22)}
    v_cmp_lt_u32 vcc, s37, v{t(22)}
    v_add_u32 v{t(15)}, v{t(14)}, v{t(6)}
    v_add_u32 v{t(16)}, v{t(14)}, v{t(7)}
    v_add_u32 v{t(17)}, v{t(14)}, v{t(8)}
    ds_write_b128 v{t(4)}, {q4(t(14))} offset:{BASE}
    v_lshrrev_b32 v{t(5)}, 1, v{t(2)}
    v_and_b32 v{t(5)}, 28, v{t(5)}
    s_mov_b32 exec_lo, 0x80808080
    s_mov_b32 exec_hi, 0x80808080
    ds_write_b32 v{t(5)}, v{t(22)} offset:{FLAG+32}
    s_mov_b64 exec, -1
    s_cbranch_vccnz K2_JOIN
    v_cmp_lt_u32 vcc, 40, v{T8}
    s_waitcnt lgkmcnt(0)""")
    for u in range(2):
        for j in range(10):
            a(f"ds_read_b32 v{BN+16*u+j}, v{BN+16*u+j} offset:{BASE}")
    a("s_cbranch_vccz K2_BDONE")
    for u in range(2):
        for j in range(10, 16):
            a(f"ds_read_b32 v{BN+16*u+j}, v{BN+16*u+j} offset:{BASE}")
    a.label("K2_BDONE")
    a("s_waitcnt lgkmcnt(0)")
    for u in range(2):
        for j in range(16):
            k = 16 * u + j
            a(f"""v_cmpx_lt_u32 vcc, {4*j}, v{VREM+u}
            v_add_u32 v{BN+k}, v{BN+k}, v{RK+k}""")
            if j >= 4:
                a(f"s_cbranch_execz K2_SDONE{u}")
            a(f"""v_and_b32 v{T9}, 0x3ff, v{R+k}
            v_lshrrev_b32 v{T8}, 5, v{R+k}
            v_lshl_add_u32 v{T9}, v{T9}, 5, v{VCB+u}
            ds_write2st64_b32 v{BN+k}, v{T8}, v{T9} offset0:{LSD//256} offset1:{LEA//256}""")
        a.label(f"K2_SDONE{u}")
        a("s_mov_b64 exec, -1")
    a(f"""v_min_u32 v{T8}, 64, v{VREM}
    v_min_u32 v{T9}, 64, v{VREM+1}
    v_lshl_add_u32 v{T8}, v{T9}, 16, v{T8}
    v_add_u32 v{VCUR}, v{VCUR}, v{T8}
    s_branch K2_JOIN""")

    a.label("K_PREP")
    a(f"""s_setprio 3
    s_sub_u32 s34, s2, 250
    s_mul_i32 s34, s34, 3
    s_add_u32 s34, s34, s33
    v_lshrrev_b32 v3, 4, v2
    v_and_b32 v4, 15, v2
    v_lshlrev_b32 v5, 11, v3
    v_lshl_add_u32 v5, v4, 3, v5
    v_lshlrev_b32 v6, 4, v2
    v_lshlrev_b32 v7, 10, v3
    v_lshl_add_u32 v7, v4, 3, v7
    v_lshlrev_b32 v8, 5, v4
    v_lshl_add_u32 v8, v3, 3, v8""")
    srd(a, 24, PGW, PGW + 1, 272 * 256)
    srd(a, 4, PU, PU + 1, 32768)

    def wf_loads(k):
        a(f"""s_add_u32 s35, s34, {18*k}
        s_lshl_b32 s{44+k}, s35, 10
        s_add_u32 s{44+k}, s{44+k}, {WF}
        s_cmp_ge_u32 s35, 32
        s_cselect_b32 s8, s4, s24
        s_cselect_b32 s9, s5, s25
        s_and_b32 s37, s35, 3
        s_lshl_b32 s37, s37, 13
        s_bfe_u32 s38, s35, 0x10004
        s_lshl_b32 s38, s38, 7
        s_bfe_u32 s39, s35, 0x20002
        s_lshl_b32 s39, s39, 1
        s_add_u32 s37, s37, s38
        s_add_u32 s37, s37, s39""")
        for j in range(8):
            a(f"buffer_load_ushort v{16+8*k+j}, v5, s[8:11], s37 offen offset:{j*256}")

    def wf_store(k):
        for j in range(4):
            a(f"v_lshl_or_b32 v{48+4*k+j}, v{17+8*k+2*j}, 16, v{16+8*k+2*j}")
        a(f"buffer_store_dwordx4 {q4(48+4*k)}, v6, s[20:23], s{44+k} offen sc1")

    a("s_mov_b32 s10, 32768\ns_mov_b32 s11, 0x20000")
    for k in range(3):
        wf_loads(k)
    a("s_barrier\ns_cmp_ge_u32 s34, 10\ns_cbranch_scc1 K_PC")
    wf_loads(3)
    a("s_waitcnt vmcnt(0)")
    wf_store(3)
    a("s_branch K_PW")
    a.label("K_PC")
    a(f"""s_sub_u32 s35, s34, 10
    s_lshr_b32 s38, s35, 2
    s_lshl_b32 s38, s38, 7
    s_and_b32 s39, s35, 3
    s_lshl_b32 s39, s39, 1
    s_add_u32 s37, s38, s39
    s_add_u32 s37, s37, 65536
    s_lshl_b32 s38, s35, 9
    s_add_u32 s38, s38, {CF}
    s_mov_b32 s39, {NEG_LOG2E}""")
    for j in range(4):
        a(f"buffer_load_ushort v{40+j}, v7, s[24:27], s37 offen offset:{j*256}")
    a("s_waitcnt vmcnt(0)")
    for j in range(4):
        a(f"v_lshlrev_b32 v{40+j}, 16, v{40+j}")
    for j in range(4):
        a(f"v_mul_f32 v{40+j}, s39, v{40+j}")
    a("v_cvt_pk_bf16_f32 v60, v40, v41\nv_cvt_pk_bf16_f32 v61, v42, v43")
    a("buffer_store_dwordx2 v[60:61], v8, s[20:23], s38 offen sc1")
    a.label("K_PW")
    for k in range(3):
        wf_store(k)
    a.label("K_PEND")
    lds_add(a, 12, 30)
    a("s_mov_b32 s39, 2\ns_branch K_PUB")

    a.lines.append("@@G")
    a.label("K_G")

    if opt.get("gp"):
        a(f"s_setprio {opt['gp']}")
    a(f"""s_and_b32 s34, s33, 3
    s_lshl_b32 s37, s34, 2
    v_add_u32 v8, s37, v4
    v_xor_b32 v10, v8, v2
    v_and_b32 v10, 15, v10
    v_lshlrev_b32 v10, 4, v10
    v_lshl_add_u32 v10, v8, 8, v10
    v_lshlrev_b32 v11, 2, v4
    v_xor_b32 v11, v11, v2
    v_and_b32 v11, 15, v11
    v_lshlrev_b32 v11, 4, v11
    v_lshl_add_u32 v11, v4, 8, v11
    v_and_b32 v12, 255, v0
    v_lshlrev_b32 v12, 4, v12
    s_mul_i32 s39, s2, 51200
    s_waitcnt lgkmcnt(0)""")
    srd(a, 24, PX, PX + 1, 26624, add="s36")
    a("s_sub_u32 s38, 6400000, s36\ns_min_u32 s26, s26, s38")
    srd(a, 4, PGW, PGW + 1, 32768, add=32768)
    srd(a, 8, PV, PV + 1, 32768)
    srd(a, 20, PWS, PWS + 1, WS_USED)
    a(f"""s_lshl_b32 s35, s34, 10
    s_add_u32 s38, s35, {XL}
    s_lshl_b32 s37, s34, 13""")
    if not opt.get("zl"):
        a("s_barrier")
    for st in range(7):
        if st < 6:
            a(f"s_add_u32 m0, s38, {st*4096}")
        else:
            a(f"s_add_u32 s38, s38, {6*4096}\ns_cmp_lt_u32 s34, 2\ns_cselect_b32 m0, s38, {JUNK}")
        a("v_add_u32 v10, 4096, v10" if st else "s_nop 0")
        a(f"buffer_load_dwordx4 v10, s[24:27], 0 offen{nt(4)} lds")
    if opt.get("zl"):
        a("s_barrier")
    lds_add(a, 40, 14)
    for sr, mat in ((4, 0), (8, 1)):
        for hf in range(2):
            a(f"s_add_u32 m0, s37, {WL+mat*32768+hf*4096}\ns_add_u32 s44, s37, {hf*4096}")
            for k in range(4):
                a(f"buffer_load_dwordx4 v11, s[{sr}:{sr+3}], s44 offen offset:{k*1024} lds")
    a("s_branch K_G2")
    a.lines.append("@@G2")
    a.label("K_G2")
    lds_add(a, 32, 14)
    a(f"s_add_u32 s39, s39, {EAS}")
    srd(a, 16, PWS, PWS + 1, 51200, add="s39")
    a("s_cmp_lt_u32 s2, 250\ns_cselect_b32 s18, s18, 0\ns_lshl_b32 s39, s36, 1")
    srd(a, 12, PWS, PWS + 1, 50176, add="s39")
    a(f"s_sub_u32 s38, {TAB_SZ}, s39\ns_min_u32 s14, s14, s38")
    a(f"""v_bfe_u32 v18, v2, 2, 2
    v_bfe_u32 v19, v2, 4, 1
    v_bfe_u32 v20, v2, 1, 1
    v_lshl_add_u32 v19, v19, 1, v20
    s_lshl_b32 s37, s34, 2
    v_add_u32 v19, s37, v19
    v_lshlrev_b32 v20, 2, v18
    v_xor_b32 v19, v19, v20
    v_lshrrev_b32 v21, 5, v2
    v_lshl_add_u32 v20, v21, 3, v18
    v_lshlrev_b32 v20, 8, v20
    v_lshl_add_u32 v20, v19, 4, v20
    v_and_b32 v19, 1, v2
    v_lshl_add_u32 v8, v19, 3, v20
    v_and_b32 v18, 31, v2
    v_xor_b32 v22, v21, v18
    v_and_b32 v22, 15, v22
    v_lshlrev_b32 v22, 4, v22
    v_lshl_add_u32 v22, v18, 8, v22
    v_add_u32 v22, {XL}, v22
    v_lshrrev_b32 v11, 3, v2
    v_lshlrev_b32 v11, 9, v11
    v_and_b32 v19, 7, v2
    v_lshl_add_u32 v11, v19, 4, v11
    s_lshl_b32 s37, s34, 7
    v_add_u32 v11, s37, v11
    s_lshl_b32 s37, s34, 12
    s_add_u32 s37, s37, {SCR}
    v_lshl_add_u32 v10, v2, 4, s37
    v_lshlrev_b32 v9, 9, v21
    v_lshl_add_u32 v9, v18, 2, v9
    v_add_u32 v9, s37, v9
    s_mov_b32 s44, {NEG_LOG2E}
    s_mov_b32 s45, 0x7fff0000
    s_mov_b32 s46, 0xffff""")
    for s in range(8):
        a(f"v_xor_b32 v{24+s}, {s*32}, v22")
    def copy_out():
        a(f"""v_lshrrev_b32 v14, 5, v12
        v_lshlrev_b32 v14, 2, v14
        v_add_u32 v14, {SM+INV}, v14
        v_and_b32 v15, 16, v12""")
        lds_wait(a, 12, 4, "K_WE", 16)
        if opt.get("eaf", 0) and opt.get("gw", 0):
            lds_wait(a, 36 if opt.get("gw", 0) == 1 else 0, opt.get("gw", 0), "K_WS1", 16)
        stamp(a, opt, 5)
        for n in range(13):
            a(f"ds_read_b32 v{32+n}, v14 offset:{512*n}")
        a("s_waitcnt lgkmcnt(0)")
        for n in range(13):
            a(f"v_add_u32 v{32+n}, v{32+n}, v15\nds_read_b128 {q4(64+4*n)}, v{32+n}")
        for n in range(13):
            a(f"s_waitcnt vmcnt({opt.get('ths', 63)}) lgkmcnt({12-n})")
            if n:
                a("v_add_u32 v12, 4096, v12")
            a(f"buffer_store_dwordx4 {q4(64+4*n)}, v12, s[16:19], 0 offen sc1")
        stamp(a, opt, 6)

    if opt.get("eaf", 0):
        copy_out()
        a("s_waitcnt vmcnt(13)")
    else:
        a("s_waitcnt vmcnt(0)")
    stamp(a, opt, 1)
    lds_add(a, 24, 14)
    lds_wait(a, 24, 4, "K_WX", 14)
    stamp(a, opt, 2)
    AB = (32, 192)
    AC = (128, 160)

    def a_reads(T):
        return [f"ds_read_b128 {q4(AB[T&1]+4*s)}, v{24+s} offset:{T*8192}" for s in range(8)]

    def mfmas(T):
        L = []
        for s in range(8):
            for mat in range(2):
                d = AC[T & 1] + 16 * mat
                L.append(f"v_mfma_f32_32x32x16_bf16 v[{d}:{d+15}], {q4(AB[T&1]+4*s)}, {q4(64+32*mat+4*s)}, {'0' if s == 0 else f'v[{d}:{d+15}]'}")
        return L

    def pack(T, ng=4):
        L = []
        for g in range(ng):
            for r in range(4):
                x, h, tt = AC[T & 1] + 4 * g + r, AC[T & 1] + 16 + 4 * g + r, 14 + (r & 1)
                L += [f"v_mul_f32 v{x}, s44, v{x}", f"v_and_b32 v{tt}, 0x7fffffff, v{h}", f"v_cvt_f16_f32 v{x}, v{x}",
                      f"v_add_u32 v{tt}, 0x8000, v{tt}", f"v_and_b32 v{x}, 0xffff, v{x}",
                      f"v_sub_u32_e64 v{tt}, v{tt}, v{x} clamp", f"v_bfi_b32 v{tt}, s45, v{tt}, v{h}",
                      f"v_bfi_b32 v{x}, s46, v{x}, v{tt}", f"ds_write_b32 v9, v{x} offset:{g*1024+r*128}"]
        return L

    def flush(T, nk=4):
        for k in range(nk):
            a(f"ds_read_b128 {q4(224+4*k)}, v10 offset:{k*1024}")
        for k in range(nk):
            a(f"v_add_u32 v16, {T*16384+k*4096}, v11\ns_waitcnt vmcnt({opt.get('ths', 63)}) lgkmcnt({nk-1-k})")
            a(f"buffer_store_dwordx4 {q4(224+4*k)}, v16, s[12:15], 0 offen sc1")

    for x in a_reads(0):
        a(x)
    m0 = mfmas(0)
    for s in range(8):
        for mat in range(2):
            for jj in range(2):
                r = 64 + mat * 32 + s * 4 + jj * 2
                a(f"ds_read_b64_tr_b16 v[{r}:{r+1}], v8 offset:{mat*32768+s*4096+jj*1024}")
        if s >= 1:
            a("s_waitcnt lgkmcnt(4)")
            a(m0[2 * s - 2] + "\n" + m0[2 * s - 1])
    a("s_waitcnt lgkmcnt(0)")
    lds_add(a, 28, 14)
    for x in a_reads(1):
        a(x)
    a(m0[14] + "\n" + m0[15])
    lds_wait(a, 28, 4, "K_WD", 16)
    stamp(a, opt, 3)
    for T in range(3):
        a("s_waitcnt lgkmcnt(0)")
        mm = mfmas(T + 1)
        pk_ = pack(T)
        a(mm[0] + "\n" + mm[1])
        if T == 0:
            a("s_nop 7")
        i = 0
        for m in mm[2:]:
            for x in pk_[i:i + 10]:
                a(x)
            i += 10
            a(m)
        for x in pk_[i:]:
            a(x)
        if T < 2:
            for x in a_reads(T + 2):
                a(x)
            a("s_nop 0")
        if T == 0 and opt.get("gw", 0) and not opt.get("eaf", 0):
            lds_wait(a, 36 if opt.get("gw", 0) == 1 else 0, opt.get("gw", 0), "K_WS1", 16)
        flush(T)
    a("s_nop 3")
    for x in pack(3, 1):
        a(x)
    flush(3, 1)
    stamp(a, opt, 4)
    if not opt.get("eaf", 0):
        copy_out()
    a(f"v_mov_b32 v16, {CNT}\ns_mov_b32 s38, {SPIN}")
    a.label("K_GN")
    a(f"""ds_read_b32 v17, v16 offset:20
    s_waitcnt vmcnt(0) lgkmcnt(0)
    v_readfirstlane_b32 s61, v17
    s_cmp_lg_u32 s61, 0
    s_cbranch_scc1 K_GNOK
    s_sleep 1
    s_sub_u32 s38, s38, 1
    s_cmp_lg_u32 s38, 0
    s_cbranch_scc1 K_GN""")
    a.label("K_GNOK")
    lds_arrive(a, 16, 3, 16)
    a("s_cbranch_scc0 K_NOS2")
    signal(a, FLG2, 16)
    a.label("K_NOS2")
    if opt.get("ct2", 0):
        a(f"v_and_b32 v241, 255, v{VTID}\ns_cmp_ge_u32 s33, {4+opt.get('ct2', 0)}\ns_cbranch_scc1 K2_JOIN")
        code_touch(a, "K_CT1", "K2_JOIN", 1, 38, 241, 242, 243)

    a.label("K2_JOIN")
    if opt.get("lp") or opt.get("gp"):
        a("s_setprio 0")
    stamp(a, opt, 7)
    a("s_waitcnt lgkmcnt(0)\ns_barrier")
    stamp(a, opt, 8)
    a(f"""v_and_b32 v{t(2)}, 63, v{VTID}
    s_cmp_eq_u32 s58, 0
    s_cbranch_scc1 K2_NOB
""")
    if opt.get("pre", 0):
        a(f"""s_cmp_ge_u32 s33, 4
        s_cbranch_scc1 K2_NOFW
        v_lshlrev_b32 v126, 4, v{t(2)}
        s_lshl_b32 s37, s33, 10
        s_add_u32 s38, s37, {CFL}
        v_add_u32 v124, s38, v126
        s_lshl_b32 s37, s33, 14
        s_add_u32 s38, s37, {WFL}
        v_add_u32 v125, s38, v126
        s_waitcnt vmcnt(0)
        ds_write_b128 v124, {q4(GA)}""")
        for n in range(16):
            a(f"ds_write_b128 v125, {q4(ACC+4*n)} offset:{n*1024}")
        a.label("K2_NOFW")
    else:
        a(f"""    v_lshlrev_b32 v126, 4, v{t(2)}
    s_and_b32 s37, s33, 3
    s_lshl_b32 s37, s37, 10
    s_add_u32 s38, s37, {CFL}
    v_add_u32 v124, s38, v126
    s_add_u32 s37, s37, {CF}
    buffer_load_dwordx4 {q4(BOP)}, v126, s[20:23], s37 offen sc1
    s_lshl_b32 s37, s33, 12
    s_add_u32 s38, s37, {WFL}
    v_add_u32 v125, s38, v126""")
        for mat in range(2):
            a(f"s_add_u32 s38, s37, {WF+mat*32768}")
            for k in range(4):
                a(f"buffer_load_dwordx4 {q4(ACC+16*mat+4*k)}, v126, s[20:23], s38 offen offset:{k*1024} sc1")
    a(f"""v_and_b32 v{t(3)}, 15, v{t(2)}
    v_lshrrev_b32 v{t(4)}, 4, v{t(2)}
    v_lshlrev_b32 v{VLANE}, 4, v{t(3)}
    s_mov_b32 s50, 0
    s_mov_b32 s51, -1
    v_lshlrev_b32 v{VGC}, 4, v{t(4)}
    v_mov_b32 v{VGM}, -1
    s_mov_b64 exec, s[50:51]
    v_add_u32 v{VGC}, {TG-32}, v{VGC}
    v_mov_b32 v{VGM}, 0x1e0
    s_mov_b64 exec, -1
    v_and_b32 v{t(3)}, 3, v{t(2)}
    v_lshlrev_b32 v{t(3)}, 3, v{t(3)}
    v_add_u32 v{VSC}, {TS}, v{t(3)}
    s_movk_i32 s54, 0x1e0
    s_mov_b32 s55, 0xfffe00""")
    srd(a, 12, PWS, PWS + 1, TAB_SZ)
    srd(a, 16, PWS, PWS + 1, TAB_SZ, add=EAS)
    srd(a, 28, PO, PO + 1, 25088, add="s36")
    a("s_sub_u32 s37, 6400000, s36\ns_min_u32 s30, s30, s37")
    a.label("K2_NOB")
    a(f"""v_mov_b32 v{t(3)}, 0
    v_and_b32 v{t(5)}, 7, v{t(2)}
    v_lshlrev_b32 v{t(4)}, 2, v{t(5)}
    ds_read_b32 v{t(22)}, v{t(4)} offset:{FLAG+32}
    ds_read_b32 v{t(23)}, v{t(3)} offset:{FLAG}
    s_waitcnt lgkmcnt(0)
    v_readfirstlane_b32 s48, v{t(23)}
    s_cmp_eq_u32 s58, 0
    s_cbranch_scc1 K2_NOP2
    s_mov_b32 s58, 0
""")
    if not opt.get("pre", 0):
        a(f"s_waitcnt vmcnt(8)\nds_write_b128 v124, {q4(BOP)}")
        for mat in range(2):
            for k in range(4):
                a(f"s_waitcnt vmcnt({7-4*mat-k})\nds_write_b128 v125, {q4(ACC+16*mat+4*k)} offset:{mat*32768+k*1024}")
    a("s_cmp_lg_u32 s33, 0\ns_cbranch_scc1 K2_W2")
    poll(a, opt, FLG2, "K_P2", 0)
    a.label("K2_W2")
    a("s_mov_b32 s63, 1\ns_branch K2_CHK")
    a.label("K2_NOP2")
    a("s_mov_b32 s63, 0")
    a.label("K2_CHK")
    a(f"""s_movk_i32 s37, {CAP4}
    v_cmp_lt_u32 vcc, s37, v{t(22)}
    s_cbranch_vccz K2_FITS
    s_cmp_eq_u32 s41, 8
    s_cbranch_scc1 K2_FITS
    s_movk_i32 s41, 8
    s_waitcnt vmcnt(0)
    s_branch K2_AGAIN""")
    a.label("K2_FITS")
    if opt.get("pair", 1):
        a("s_cmp_eq_u32 s42, 0\ns_cbranch_scc1 K2_HAVEG")
        a(f"v_lshl_add_u32 v{t(24)}, v{t(22)}, 3, v{t(5)}\ns_nop 0\ns_sub_u32 s37, 11, s33")
        for k in range(1, 8):
            a(f"v_mov_b32_dpp v{t(25+k)}, v{t(24)} row_ror:{k} row_mask:0xf bank_mask:0xf")
        for k in range(1, 8):
            a(f"v_sub_u32 v{t(25+k)}, v{t(24)}, v{t(25+k)}")
        for k in range(1, 8):
            a(f"v_lshrrev_b32 v{t(25+k)}, 31, v{t(25+k)}")
        a(f"""v_add3_u32 v{t(25)}, v{t(26)}, v{t(27)}, v{t(28)}
        v_add3_u32 v{t(25)}, v{t(25)}, v{t(29)}, v{t(30)}
        v_add3_u32 v{t(25)}, v{t(25)}, v{t(31)}, v{t(32)}
        s_cmp_lt_u32 s33, 4
        s_cselect_b32 s37, {"s33, s37" if opt.get("pair", 1) == 1 else "s33, s37"}
        {"s_sub_u32 s37, 7, s37" if opt.get("pair", 1) == 2 else ""}
        v_cmp_eq_u32 vcc, s37, v{t(25)}
        s_nop 0
        s_ff1_i32_b64 s43, vcc
        s_mul_i32 s52, s43, 49
        s_add_u32 s52, s52, 2
        s_lshr_b32 s52, s52, 2""")
        a.label("K2_HAVEG")
    a(f"""v_readlane_b32 s44, v{t(22)}, s43
    s_mul_i32 s49, s43, {GSTR}
    v_mov_b32 v{t(7)}, 0x1e0
    v_lshrrev_b32 v{t(8)}, 4, v{t(2)}
    v_and_b32 v{t(9)}, 15, v{t(2)}
    s_add_u32 s45, s44, 127
    s_lshr_b32 s45, s45, 7
    s_max_u32 s59, s44, 4
    s_sub_u32 s59, s59, 4
    s_bfe_u32 s57, s59, 0x10006
    s_andn2_b32 s59, s59, 63
    s_add_u32 s37, s49, s59
    s_sub_u32 s59, s44, s59
    v_lshl_add_u32 v{t(6)}, v{t(2)}, 2, s37
    ds_read2st64_b32 v[{t(10)}:{t(11)}], v{t(6)} offset0:{LSD//256} offset1:{LEA//256}
    v_lshlrev_b32 v{t(12)}, 2, v{t(2)}
    v_cmp_gt_u32 vcc, s59, v{t(12)}
    v_and_b32 v{t(13)}, 12, v{t(12)}
    v_and_b32 v{t(14)}, 12, v{t(2)}
    v_lshl_add_u32 v{t(13)}, v{t(13)}, 2, v{t(14)}
    v_and_b32 v{t(14)}, 64, v{t(12)}
    v_add3_u32 v{t(6)}, v{t(13)}, v{t(14)}, s37
    s_add_u32 s59, s59, 15
    s_lshr_b32 s59, s59, 4
    s_add_u32 s37, s49, {LSD}
    v_lshl_add_u32 v{PSRC}, v{t(8)}, 4, s37
    v_and_b32 v{PD}, 0xfc, v{t(2)}
    v_add_u32 v{PD}, s37, v{PD}
    s_add_u32 s37, s49, {LEA}
    v_lshl_add_u32 v{PG}, v{t(9)}, 2, s37
    s_mov_b64 exec, s[50:51]
    v_subrev_u32 v{PG}, {LEA-LSD}, v{PG}
    s_mov_b64 exec, -1
    s_sub_u32 s60, s45, 1
    s_and_b32 s37, s33, 3
    s_lshl_b32 s37, s37, 2
    s_bitcmp1_b32 s33, 2
    s_cselect_b32 s38, 32, 0
    s_add_u32 s37, s37, {PROG}
    s_add_u32 s37, s37, s38
    v_mov_b32 v{VT0}, s37
    s_waitcnt lgkmcnt(0)
    v_cndmask_b32 v{t(10)}, v{t(7)}, v{t(10)}, vcc
    v_cndmask_b32 v{t(11)}, v{t(3)}, v{t(11)}, vcc
    s_mov_b32 exec_hi, 0
    ds_write2st64_b32 v{t(6)}, v{t(10)}, v{t(11)} offset0:{LSD//256} offset1:{LEA//256}
    s_mov_b32 exec_hi, -1""")
    idx_reads(a, 0, 0)
    idx_reads(a, 1, 1)
    a("s_cmp_lt_u32 0, s45")
    enable_srds(a, opt)
    a("s_cmp_eq_u32 s63, 0\ns_cbranch_scc1 K2_NOW\ns_waitcnt lgkmcnt(0)\ns_barrier")
    a.label("K2_NOW")
    stamp(a, opt, 9)
    a("s_setprio 3\ns_waitcnt lgkmcnt(3)")
    for part in issue_parts(0):
        for x in part:
            a(x)
    a("s_cmp_eq_u32 s42, 0\ns_cbranch_scc1 K2_NOINIT")
    XA = 64
    a(f"""v_and_b32 v114, 63, v{VTID}
    v_and_b32 v118, 15, v114
    v_lshrrev_b32 v119, 4, v114
    v_add_u32 v100, s52, v118
    v_xor_b32 v101, v119, v100
    v_and_b32 v101, 15, v101
    v_lshlrev_b32 v101, 4, v101
    v_lshl_add_u32 v100, v100, 8, v101
    v_add_u32 v100, {XL}, v100
    v_lshlrev_b32 v114, 4, v114
    v_add_u32 v114, {WFL}, v114""")
    for s in range(4):
        if s:
            a(f"v_xor_b32 v101, {s*64}, v100")
        a(f"ds_read_b128 {q4(XA+4*s)}, v{101 if s else 100}")
    ring = [80, 84, 88, 92, 108, 120, 124, GA + 8, GA + 12] + [BOP + 4 * k for k in range(3)]
    DEPTH = 10
    side = ["s_lshl_b32 s37, s33, 12", f"s_add_u32 s37, s37, {XAL}",
            "v_lshl_add_u32 v115, v118, 5, s37", "v_lshl_add_u32 v115, v119, 3, v115",
            f"s_sub_u32 s37, s37, {32+CFL}", "v_lshlrev_b32 v117, 5, v118", "v_lshl_add_u32 v117, v119, 4, v117",
            f"v_add_u32 v117, {CFL}, v117",
            "s_mov_b64 exec, s[50:51]\nv_add_u32 v117, s37, v117\ns_mov_b64 exec, -1\ns_nop 1",
            f"s_mov_b32 s38, {NEG_LOG2E}"]
    lds_ops = []
    for f in range(64 + DEPTH):
        if f >= DEPTH:
            ff = f - DEPTH
            mat, b, s = ff >> 5, (ff >> 2) & 7, ff & 3
            d = (ACC if mat else P) + 4 * b
            younger = len(lds_ops) - 1 - lds_ops.index(("r", ff))
            a(f"s_waitcnt lgkmcnt({min(younger, 15)})")
            a(mf16(d, XA + 4 * s, ring[ff % len(ring)], "0" if s == 0 else q4(d)))
            if ff < len(side):
                a(side[ff])
            if 36 <= ff < 60:
                pb, k = (ff - 36) // 3, (ff - 36) % 3
                e = P + 4 * pb
                if k == 0:
                    a(f"v_mul_f32 v{e}, s38, v{e}\nv_mul_f32 v{e+1}, s38, v{e+1}")
                elif k == 1:
                    a(f"v_mul_f32 v{e+2}, s38, v{e+2}\nv_mul_f32 v{e+3}, s38, v{e+3}")
                else:
                    a(f"v_cvt_pk_bf16_f32 v{e}, v{e}, v{e+1}\nv_cvt_pk_bf16_f32 v{e+1}, v{e+2}, v{e+3}")
                    a(f"ds_write_b64 v115, v[{e}:{e+1}] offset:{pb*512}")
                    lds_ops.append(("w", pb))
        if f < 64:
            a(f"ds_read_b128 {q4(ring[f % len(ring)])}, v114 offset:{f*1024}")
            lds_ops.append(("r", f))
    a("s_nop 3")
    for b in range(8):
        a(f"ds_read_b128 {q4(BOP+4*b)}, v117 offset:{b*512}")
    a.label("K2_NOINIT")
    a("s_setprio 1")
    stamp(a, opt, 10)
    a("s_mov_b32 s46, 0\ns_cmp_eq_u32 s45, 0\ns_cbranch_scc1 K2_TDONE")
    a("s_waitcnt vmcnt(16) lgkmcnt(0)")
    for tt in range(4):
        a(mf16(P + 4 * tt, GA, BOP + 4 * tt, "0"))
    for i in range(16):
        a(f"v_mov_b32 v{Z+i}, 0")
    a("s_cmp_eq_u32 s60, 0\ns_cbranch_scc1 K2_LAST0")
    a(".p2align 6")
    topt = dict(opt)
    topt["stamp"] = 0
    topt["prio"] = 2
    topt["nosel"] = 1
    a.label("K2_LOOP")
    tile(a, topt, 0, 0, filler=["s_cmp_eq_u32 s46, s60", "s_nop 0"])
    a("s_cbranch_scc1 K2_LAST1")
    tile(a, topt, 1, 1, filler=[f"v_add_u32 v{PG}, 256, v{PG}", f"v_add_u32 v{PD}, 256, v{PD}"])
    a(f"""v_add_u32 v{PSRC}, 256, v{PSRC}
    s_cmp_lg_u32 s46, s60
    s_cbranch_scc1 K2_LOOP""")
    for slot in range(2):
        a.label(f"K2_LAST{slot}")
        a(f"s_cmp_eq_u32 s57, 0\ns_cbranch_scc1 K2_HALF{slot}")
        last_tile(a, topt, slot, slot, 2)
        a("s_branch K2_TDONE")
        a.label(f"K2_HALF{slot}")
        last_tile(a, topt, slot, slot, 1)
        if slot == 0:
            a("s_branch K2_TDONE")
    a.label("K2_TDONE")
    if opt.get("lag"):
        a(f"v_mov_b32 v{VT1}, 0x7fff\nds_write2_b32 v{VT0}, v{VT1}, v{VT1} offset0:0 offset1:16")
    stamp(a, opt, 11)
    a("""s_waitcnt vmcnt(0) lgkmcnt(0)
    s_mov_b32 s42, 0
    s_cmp_lg_u32 s48, 0
    s_cbranch_scc1 K2_AGAIN
    s_add_u32 s40, s40, s41
    s_cmp_ge_u32 s40, 256
    s_cbranch_scc1 K2_EPI""")
    a.label("K2_AGAIN")
    a(f"""s_setprio 0
    s_waitcnt lgkmcnt(0)
    s_barrier
    v_and_b32 v2, 63, v{VTID}
    v_lshlrev_b32 v3, 4, v2
    v_mov_b32 v4, 0
    v_mov_b32 v5, 0
    v_mov_b32 v6, 0
    v_mov_b32 v7, 0
    ds_write_b128 v3, v[4:7] offset:{HIST}
    ds_write_b32 v4, v4 offset:{FLAG}
    s_waitcnt lgkmcnt(0)
    s_barrier
    s_branch K2_ROUND""")
    a.label("K2_EPI")
    a(f"""s_mul_i32 s53, s43, 49
    s_add_u32 s53, s53, 51
    s_lshr_b32 s53, s53, 2
    s_sub_u32 s53, s53, s52
    v_and_b32 v2, 63, v{VTID}
    v_lshrrev_b32 v3, 4, v2
    v_lshlrev_b32 v3, 2, v3
    v_and_b32 v4, 15, v2
    v_add_u32 v5, s52, v3
    v_lshlrev_b32 v5, 8, v5
    v_lshl_add_u32 v5, v4, 3, v5
    s_mov_b32 s36, {NEG_LOG2E}
    s_mov_b32 s37, {NEG_LOG2E}
    v_mov_b32 v6, 0x7ffffff0""")
    for r in range(4):
        a(f"""v_add_u32 v7, {r}, v3
        v_cmp_gt_u32 vcc, s53, v7
        s_nop 1
        v_cndmask_b32 v{8+r}, v6, v5, vcc""")
    for hh in range(2):
        lo = 16 * hh
        for i in range(lo, lo + 16, 2):
            a(f"v_pk_mul_f32 v[{16+i}:{17+i}], v[{ACC+i}:{ACC+i+1}], s[36:37]")
        for i in range(lo, lo + 16):
            a(f"v_exp_f32 v{16+i}, v{16+i}")
        for i in range(lo, lo + 16, 2):
            a(f"v_pk_add_f32 v[{16+i}:{17+i}], v[{16+i}:{17+i}], 1.0 op_sel_hi:[1,0]")
        for i in range(lo, lo + 16):
            a(f"v_rcp_f32 v{16+i}, v{16+i}")
        for i in range(lo, lo + 16, 2):
            a(f"v_pk_mul_f32 v[{16+i}:{17+i}], v[{16+i}:{17+i}], v[{ACC+i}:{ACC+i+1}]")
        for r in range(4):
            o = 48 + (r * 2 + hh) * 2
            y = lambda tt: 16 + (4 * hh + tt) * 4 + r
            a(f"v_cvt_pk_bf16_f32 v{o}, v{y(0)}, v{y(1)}\nv_cvt_pk_bf16_f32 v{o+1}, v{y(2)}, v{y(3)}")
            a(f"buffer_store_dwordx2 v[{o}:{o+1}], v{8+r}, s[28:31], 0 offen offset:{r*256+hh*128} sc1")
    stamp(a, opt, 12)
    if opt.get("stamp"):
        a("s_waitcnt lgkmcnt(0) vmcnt(0)")
        srd(a, 4, PWS, PWS + 1, 0x100000, add=STAMP)
        a("s_lshl_b32 s3, s2, 3\ns_add_u32 s3, s3, s33\ns_lshl_b32 s3, s3, 6\nv_mov_b32 v1, 0")
        for k, idx in enumerate(opt["stamps"]):
            a(f"v_mov_b32 v0, s{84+2*k}\nbuffer_store_dword v0, v1, s[4:7], s3 offen offset:{4*idx}")
        a(f"v_mov_b32 v0, s44\nbuffer_store_dword v0, v1, s[4:7], s3 offen offset:56\ns_waitcnt vmcnt(0)")
    a.label("K_END")
    a("s_endpgm")
    cut = lambda m: a.lines.index("@@" + m)
    L = a.lines
    b, s2, s2b, s3, s3b, g, g2 = (cut(m) for m in ("BODY", "S2", "S2B", "S3", "S3B", "G", "G2"))
    a.lines = (L[:b] + L[s3+1:s3b] + L[s2+1:s2b] + L[g+1:g2] + L[s2b+1:s3] + L[b+1:s2] + L[s3b+1:g] + L[g2+1:])
    notes = {'K_S2': "wave 2: touches this workgroup's share of the B / V lines", 'K_S2B': "wave 2: stages the first half of the two chunks' edge attributes in LDS", 'K_S01': 'waves 0, 1: one chunk each, 16 edges per lane; ranks by bucket and by (die range, source range)', 'K_S3B': 'wave 3: one-hot rows, token into LDS, second half of the attributes, first hand-off', 'K_G2': 'waves 4..7: node table through a per-wave LDS transpose, then the attribute reorder', 'K_S3': 'wave 3: workgroup 0 publishes the launch token through d_debug', 'K_PUB': "records (or weight fragments) have been issued; the last wave to see its stores land raises this workgroup's flag", 'K_GO1': 'every chunk is sorted: segment bounds of chunks tid and tid+256 for this bucket', 'K2_ROUND': 'one round takes up to 16 records per segment; oversize buckets repeat it over windows of 8 threads', 'K_PREP': 'workgroups 250..255, waves 0..2: A, U and -log2e*C as MFMA B-operand fragments', 'K_G': 'waves 4..7: x rows and B / V into LDS', 'K2_JOIN': 'lists are complete; fragments into LDS, second hand-off, group choice, first tile, x@A and x@U', 'K2_LOOP': '32-edge tiles, two register slots; each tile issues the loads of the next one', 'K2_LAST0': 'final tile: its last 16 edges sit row-first, s59 register rows are live', 'K2_AGAIN': 'next round of an oversize bucket', 'K2_EPI': 'out = silu(x@U + aggregate)'}
    out = []
    for ln in a.lines:
        if ln.endswith(":") and ln[:-1] in notes:
            out.append("; " + notes[ln[:-1]])
        out.append(ln)
    a.lines = out
    a.lines = [ln + " sc1" if ln.startswith("buffer_load_dwordx4") and "lds" not in ln and ("s[12:15]" in ln or "s[16:19]" in ln)
               else ln for ln in a.lines]
    return a


HEADER = """; Edge-gated message passing layer in one launch, one workgroup per CU.
;     hand-off flags 0xFA0000 / 0xFA4000 (valid only when equal to this launch's token), attributes 0x1000000.
;              98-node bucket; after the first grid-wide hand-off, this bucket's records sorted by 12/13-node
;   after the second hand-off, per 32-edge tile: gate = e@C + onehot@(x@A) by MFMA, sigmoid * hv on the VALU,
"""


def build(opt):
    k = gen_fused(opt)
    for pr in lint(k.lines):
        print(f"LINT: need {pr[2]} have {pr[3]}: {pr[4]}  ->  {pr[5]}", file=sys.stderr)
    nm = NAME + "_kernel"
    s = HEADER + f"; @launch grid=(256,1,1) block=(512,1,1) lds={LDS}\n"
    s += '.amdgcn_target "amdgcn-amd-amdhsa--gfx950"\n.text\n'
    s += f".globl {nm}\n.p2align 8\n.type {nm},@function\n" + k.text()
    s += "; keeps the code-touching load above inside this section\n.p2align 8\n.fill 256, 4, 0xbf810000\n"
    s += '.section .rodata,"a"\n' + kd(nm, 256, 102)
    return s


if __name__ == "__main__":
    opt = {}
    out = f"cdna_kernels/{NAME}.s"
    for arg in sys.argv[1:]:
        if arg.startswith("-o"):
            out = arg[2:]
        else:
            k, _, v = arg.partition("=")
            opt[k] = int(v) if v else 1
    if opt.get("stamp") == 1:
        opt["stamps"] = [0, 1, 2, 3, 4, 5, 6, 7, 8]
    elif opt.get("stamp") == 2:
        opt["stamps"] = [0, 7, 8, 9, 10, 11, 12]
    open(out, "w").write(build(opt))
    print("wrote", out)
```

```python
import sys
from asmlib import Asm, lint
import gen
from gen import (last_tile, srd, code_touch, weave, mf16, q4, tile, idx_reads, issue_parts, enable_srds, kd,
                 NAME, NEG_LOG2E, TAB_SZ, REC, OFF, WF, CF, EAS, WS_USED, STAMP,
                 HIST, BASE, FLAG, PROG, TG, TS, GSTR, LSD, LEA, CAP4,
                 ACC, BOP, P, Z, GA, SA, VLANE, VGC, VSC, PSRC, PG, PD, VTID, VCUR, VEND, VGM, VT0, VT1)

FLG1, FLG2 = 0x0FA0000, 0x0FA4000
WL, SCR, XAL = 0, 25856, 25856
XL = 65536
SM = 92160
H1, H2, B1, B2, STG, INV = 0, 2048, 2560, 4608, 5120, 11520
EAL = SM + 17920
WFL = SM
CFL = WFL + 65536
JUNK = 161792
CNT = 162816
LDS = 163072
SDW = "dst_sel:DWORD dst_unused:UNUSED_PAD"
SPIN = 1 << 19
PX, PE, PS, PDst, PU, PV, PGW, PO, PDBG, PWS = 64, 66, 68, 70, 72, 74, 76, 78, 80, 82


def stamp(a, opt, idx):
    if opt.get("stamp") and idx in opt["stamps"]:
        k = opt["stamps"].index(idx)
        a(f"s_memrealtime s[{84+2*k}:{85+2*k}]")


def lds_add(a, word, vt):
    a(f"""v_mov_b32 v{vt}, {CNT}
    v_mov_b32 v{vt+1}, 1
    s_mov_b64 exec, 1
    ds_add_u32 v{vt}, v{vt+1} offset:{word}
    s_mov_b64 exec, -1""")


def lds_arrive(a, word, last, vt):
    a(f"""v_mov_b32 v{vt}, {CNT}
    v_mov_b32 v{vt+1}, 1
    s_mov_b64 exec, 1
    ds_add_rtn_u32 v{vt+1}, v{vt}, v{vt+1} offset:{word}
    s_mov_b64 exec, -1
    s_waitcnt lgkmcnt(0)
    v_readfirstlane_b32 s37, v{vt+1}
    s_cmp_eq_u32 s37, {last}""")


def lds_wait(a, word, target, tag, vt):
    a(f"v_mov_b32 v{vt}, {CNT}\ns_mov_b32 s38, {SPIN}")
    a.label(tag)
    a(f"""ds_read_b32 v{vt+1}, v{vt} offset:{word}
    s_waitcnt lgkmcnt(0)
    v_readfirstlane_b32 s37, v{vt+1}
    s_cmp_ge_u32 s37, {target}
    s_cbranch_scc1 {tag}_OK
    s_sleep 1
    s_sub_u32 s38, s38, 1
    s_cmp_lg_u32 s38, 0
    s_cbranch_scc1 {tag}""")
    a.label(tag + "_OK")


def signal(a, flg, vt):
    a(f"""s_lshl_b32 s37, s2, 4
    s_add_u32 s37, s37, {flg}
    v_mov_b32 v{vt}, 0
    v_mov_b32 v{vt+1}, s61
    s_mov_b64 exec, 1
    buffer_store_dword v{vt+1}, v{vt}, s[20:23], s37 offen sc1
    s_mov_b64 exec, -1""")


def poll(a, opt, flg, tag, vt):
    agg = opt.get("agg", 8) if flg == FLG1 else opt.get("agg2", 0)
    a(f"""v_and_b32 v{vt}, 63, v{VTID}
    v_lshlrev_b32 v{vt}, 4, v{vt}
    s_mov_b32 s38, {SPIN}
    s_mov_b32 s39, {flg}""")
    if agg:
        a(f"s_cmp_ge_u32 s2, {agg}\ns_cbranch_scc1 {tag}_L")
    a.label(tag)
    for k in range(4):
        a(f"buffer_load_dword v{vt+1+k}, v{vt}, s[20:23], s39 offen offset:{k*1024} sc1")
    a("s_waitcnt vmcnt(0)")
    for k in range(4):
        a(f"v_xor_b32 v{vt+1+k}, s61, v{vt+1+k}")
    a(f"""v_or3_b32 v{vt+1}, v{vt+1}, v{vt+2}, v{vt+3}
    v_or_b32 v{vt+1}, v{vt+1}, v{vt+4}
    v_cmp_ne_u32 vcc, 0, v{vt+1}
    s_cbranch_vccz {tag}_A
    s_sleep {opt.get("psl", 2)}
    s_sub_u32 s38, s38, 1
    s_cmp_lg_u32 s38, 0
    s_cbranch_scc1 {tag}""")
    a.label(tag + "_A")
    if agg:
        a(f"""s_lshl_b32 s39, s2, 8
        s_add_u32 s39, s39, {flg+4096}
        v_mov_b32 v{vt}, 0
        v_mov_b32 v{vt+1}, s61
        s_mov_b64 exec, 1
        buffer_store_dword v{vt+1}, v{vt}, s[20:23], s39 offen sc1
        s_mov_b64 exec, -1
        s_branch {tag}_OK""")
        a.label(tag + "_L")
        a(f"""s_and_b32 s39, s2, {agg-1}
        s_lshl_b32 s39, s39, 8
        s_add_u32 s39, s39, {flg+4096}
        v_mov_b32 v{vt}, 0
        s_mov_b64 exec, 1""")
        a.label(tag + "_M")
        a(f"""buffer_load_dword v{vt+1}, v{vt}, s[20:23], s39 offen sc1
        s_waitcnt vmcnt(0)
        v_cmp_ne_u32 vcc, s61, v{vt+1}
        s_cbranch_vccz {tag}_N
        s_sleep {opt.get("psl2", 4)}
        s_sub_u32 s38, s38, 1
        s_cmp_lg_u32 s38, 0
        s_cbranch_scc1 {tag}_M""")
        a.label(tag + "_N")
        a("s_mov_b64 exec, -1")
    a.label(tag + "_OK")


def gen_fused(opt):
    a = Asm()
    nt = lambda bit: " nt" if opt.get("nt", 0) & bit else ""
    a.label(NAME + "_kernel")
    a("s_cmp_ge_u32 s2, 256\ns_cbranch_scc1 K_END")
    stamp(a, opt, 0)
    a(f"""s_load_dwordx16 s[64:79], s[0:1], 0
    s_load_dwordx4 s[80:83], s[0:1], 64
    v_mov_b32 v{VTID}, v0
    v_lshrrev_b32 v1, 6, v0
    v_and_b32 v2, 63, v0
    v_readfirstlane_b32 s33, v1
    s_and_b32 s3, s2, 7
    s_lshl_b32 s3, s3, 5
    s_lshr_b32 s32, s2, 3
    s_add_u32 s32, s32, s3
    v_lshrrev_b32 v4, 4, v2
    s_mov_b32 s40, 0
    s_movk_i32 s41, 256
    s_mov_b32 s42, 1
    s_mov_b32 s58, 1
    s_mov_b32 s62, 4
    v_lshlrev_b32 v8, 2, v0
    v_add_u32 v8, {SM}, v8
    v_mov_b32 v9, 0
    ds_write_b32 v8, v9
    ds_write_b32 v8, v9 offset:512
    v_lshlrev_b32 v8, 2, v2
    v_add_u32 v8, {CNT}, v8
    ds_write_b32 v8, v9
    s_mul_i32 s36, s32, 25088
    s_cmp_ge_u32 s33, 4
    s_cbranch_scc1 K_G
""")
    if opt.get("cts", 0):
        a("s_cmp_lg_u32 s33, 3\ns_cbranch_scc1 K_NOCT\ns_and_b32 s37, s2, 0xf8\nv_add_u32 v241, s37, v2\ns_mov_b64 exec, 0xff")
        code_touch(a, "K_CT0", NAME + "_kernel", 1, 34, 241, 242, 243)
        a("s_mov_b64 exec, -1")
    else:
        a("s_cmp_lt_u32 s33, 2\ns_cbranch_scc1 K_NOCT\nv_and_b32 v241, 127, v0")
        code_touch(a, "K_CT0", NAME + "_kernel", 1, 34, 241, 242, 243)
        a("v_add_u32 v242, 16384, v242\nglobal_load_dword v243, v242, s[34:35]")
    a.label("K_NOCT")

    a(f"""s_mul_i32 s35, s33, 3200
    v_lshl_add_u32 v4, v2, 4, s35
    s_lshl_b32 s37, s33, 10
    s_add_u32 s37, s37, {SM}
    v_mov_b32 v5, s37
    s_lshl_b32 s37, s33, 8
    s_add_u32 s37, s37, {SM}
    v_mov_b32 v7, s37
    v_mov_b32 v6, 4
    v_cmp_gt_u32 s[56:57], 50, v2
    s_mul_i32 s39, s2, 6400
    s_waitcnt lgkmcnt(0)""")
    srd(a, 20, PWS, PWS + 1, WS_USED)
    a("""s_cmp_eq_u32 s33, 3
    s_cbranch_scc1 K_S3
    s_cmp_ge_u32 s2, 250
    s_cbranch_scc1 K_PREP
    s_cmp_eq_u32 s33, 2
    s_cbranch_scc1 K_S2""")
    if opt.get("sp", 1):
        a("s_setprio 3")
    D, S_, BA, RK1, BB, RK2 = 10, 26, 42, 58, 74, 90
    srd(a, 24, PDst, PDst + 1, 6400, add="s39")
    srd(a, 4, PS, PS + 1, 6400, add="s39")
    a("s_mov_b64 exec, s[56:57]")
    for m in range(4):
        a(f"buffer_load_dwordx4 {q4(D+4*m)}, v4, s[24:27], 0 offen offset:{800*m}{nt(1)}")
        a(f"buffer_load_dwordx4 {q4(S_+4*m)}, v4, s[4:7], 0 offen offset:{800*m}{nt(1)}")
    a("s_mov_b64 exec, -1\ns_barrier\ns_branch K_S01")
    a.lines.append("@@BODY")
    a.label("K_S01")
    a(f"s_add_u32 s39, s39, {REC}")
    srd(a, 8, PWS, PWS + 1, 6400, add="s39")
    a(f"s_lshl_b32 s39, s2, 11\ns_add_u32 s39, s39, {OFF}")
    srd(a, 28, PWS, PWS + 1, 2048, add="s39")
    a("s_movk_i32 s39, 5352\nv_mov_b32 v109, 1338\ns_mov_b64 exec, s[56:57]")
    for k in range(16):
        if k % 4 == 0:
            a(f"s_waitcnt vmcnt({6-2*(k//4)})")
        if k == 0:
            stamp(a, opt, 1)
        d, s_, b, rk, b2, rk2, dl, g, t = D + k, S_ + k, BA + k, RK1 + k, BB + k, RK2 + k, 106, 107, 108
        a(f"""v_mul_u32_u24 v{b}, 5350, v{d}
        v_lshrrev_b32 v{b}, 19, v{b}
        v_lshrrev_b32 v{t}, 12, v{s_}
        v_and_b32 v{b2}, 0xe0, v{b}
        v_mul_u32_u24 v{dl}, 98, v{b}
        v_lshl_add_u32 v{b}, v{b}, 2, v5
        ds_add_rtn_u32 v{rk}, v{b}, v6 offset:{H1}
        v_lshl_add_u32 v{b2}, v{t}, 2, v{b2}
        v_add_u32 v{b2}, v{b2}, v7
        ds_add_rtn_u32 v{rk2}, v{b2}, v6 offset:{H2}
        v_sub_u32 v{dl}, v{d}, v{dl}
        v_mad_u32_u24 v{g}, v{dl}, s39, v109
        v_lshrrev_b32 v{g}, 16, v{g}
        v_mad_u32_u24 v{t}, v{g}, 49, 2
        v_lshrrev_b32 v{t}, 2, v{t}
        v_sub_u32 v{dl}, v{dl}, v{t}
        v_lshlrev_b32 v{g}, 29, v{g}
        v_lshl_or_b32 v{g}, v{s_}, 14, v{g}
        v_lshl_or_b32 v{s_}, v{dl}, 10, v{g}""")
    a(f"""s_mov_b64 exec, -1
    v_lshl_add_u32 v10, v2, 4, v5
    v_lshl_add_u32 v11, v2, 2, v7
    ds_read_b128 v[12:15], v10 offset:{H1}
    ds_read_b32 v20, v11 offset:{H2}
    s_waitcnt lgkmcnt(0)""")
    stamp(a, opt, 2)
    a(f"""v_add_u32 v13, v13, v12
    v_add_u32 v14, v14, v13
    v_add_u32 v15, v15, v14
    v_mov_b32 v16, v15
    v_mov_b32 v21, v20
    s_nop 0""")
    for m in ("row_shr:1 row_mask:0xf", "row_shr:2 row_mask:0xf", "row_shr:4 row_mask:0xf", "row_shr:8 row_mask:0xf",
              "row_bcast:15 row_mask:0xa", "row_bcast:31 row_mask:0xc"):
        a(f"v_add_u32_dpp v16, v16, v16 {m} bank_mask:0xf\nv_add_u32_dpp v21, v21, v21 {m} bank_mask:0xf\ns_nop 0")
    a(f"""v_sub_u32 v16, v16, v15
    v_sub_u32 v21, v21, v20
    v_add_u32 v17, v16, v12
    v_add_u32 v18, v16, v13
    v_add_u32 v19, v16, v14
    ds_write_b128 v10, v[16:19] offset:{H1}
    ds_write_b32 v11, v21 offset:{H2}
    s_mov_b64 exec, s[56:57]""")
    for k in range(16):
        a(f"ds_read_b32 v{BA+k}, v{BA+k} offset:{H1}\nds_read_b32 v{BB+k}, v{BB+k} offset:{H2}")
    a(f"""s_mov_b64 exec, -1
    v_add_u32 v25, v16, v15
    v_lshl_or_b32 v22, v17, 16, v16
    v_lshl_or_b32 v23, v18, 16, v17
    v_lshl_or_b32 v24, v19, 16, v18
    v_lshl_or_b32 v25, v25, 16, v19
    v_subrev_u32 v10, {SM}, v10
    s_add_u32 s35, s35, {SM}
    v_lshlrev_b32 v106, 3, v4
    v_add_u32 v110, {SM}, v4
    s_mov_b64 exec, s[56:57]
    s_waitcnt lgkmcnt(0)""")
    for k in range(16):
        a(f"""v_add_u32 v{BB+k}, v{BB+k}, v{RK2+k}
        v_add3_u32 v{BA+k}, v{BA+k}, v{RK1+k}, s35
        v_lshrrev_b32 v107, 2, v{BB+k}
        v_add_u32 v{BB+k}, s35, v{BB+k}
        v_or_b32 v{S_+k}, v{S_+k}, v107
        v_add_u32 v108, {EAL+32*(k&3)+6400*(k>>2)}, v106
        ds_write_b32 v{BA+k}, v{S_+k} offset:{STG}
        ds_write_b32 v{BB+k}, v108 offset:{INV}""")
    for m in range(4):
        a(f"ds_read_b128 {q4(112+4*m) if m < 2 else q4(12+4*(m-2))}, v110 offset:{STG+800*m}")
    a(f"v_mov_b32 v30, {CNT}\nv_mov_b32 v31, 1\ns_mov_b64 exec, 1\nds_add_u32 v30, v31 offset:12\nv_lshl_add_u32 v30, s33, 2, v30\nds_add_u32 v30, v31 offset:48\ns_mov_b64 exec, s[56:57]")
    for m in range(4):
        a(f"s_waitcnt lgkmcnt({5-m})")
        a(f"buffer_store_dwordx4 {q4(112+4*m) if m < 2 else q4(12+4*(m-2))}, v4, s[8:11], 0 offen offset:{800*m} sc1")
    a("s_mov_b64 exec, -1\nbuffer_store_dwordx4 v[22:25], v10, s[28:31], 0 offen sc1")
    lds_add(a, 56, 30)
    stamp(a, opt, 3)
    a("s_mov_b32 s39, 1")
    a.label("K_PUB")
    lds_wait(a, 20, 1, "K_NONCE", 30)
    a("s_mov_b32 s61, s37\ns_waitcnt vmcnt(0)")
    lds_arrive(a, 0, "s39", 30)
    a("s_cbranch_scc0 K_SIG1D")
    signal(a, FLG1, 30)
    a.label("K_SIG1D")
    stamp(a, opt, 4)
    if opt.get("p0", 1):
        a("s_cmp_lg_u32 s33, 0\ns_cbranch_scc1 K_W1\ns_setprio 0")
        poll(a, opt, FLG1, "K_P1", 30)
        a(f"v_mov_b32 v30, {CNT}\nv_mov_b32 v31, 1\nds_write_b32 v30, v31 offset:4\ns_branch K_GO1")
    else:
        a("s_branch K_W1")

    a.lines.append("@@S2")
    a.label("K_S2")
    if opt.get("wt", 1):
        srd(a, 24, PGW, PGW + 1, 32768, add=32768)
        a(f"""s_bitcmp1_b32 s2, 7
        s_cselect_b32 s24, s{PV}, s24
        s_cselect_b32 s25, s{PV+1}, s25
        s_bfe_u32 s37, s2, 0x40003
        s_lshl_b32 s37, s37, 11
        v_lshlrev_b32 v22, 7, v2
        s_mov_b64 exec, 0xffff
        buffer_load_dword v23, v22, s[24:27], s37 offen
        s_mov_b64 exec, -1""")
    a("s_barrier\ns_branch K_S2B")
    a.lines.append("@@S2B")
    a.label("K_S2B")
    eaw = opt.get("eaw", 5)
    nsplit = opt.get("split", 25)

    def ea_part(lo, hi, tag):
        a("s_mul_i32 s39, s2, 51200")
        srd(a, 8, PE, PE + 1, 51200, add="s39")
        a("v_lshlrev_b32 v22, 4, v2")
        if eaw != 6:
            lds_wait(a, {0: 24, 1: 32, 5: 40}[eaw], 4, tag, 30)
        a("s_nop 1")
        n = lo
        while n < hi:
            if n - lo == opt.get("he", 16):
                lds_wait(a, 56, 2, tag + "H", 30)
                a("s_nop 1")
            a(f"s_mov_b32 m0, {EAL+n*1024}\ns_mov_b32 s37, {n*1024}")
            for k in range(min(4, hi - n)):
                a(f"buffer_load_dwordx4 v22, s[8:11], s37 offen offset:{k*1024}{nt(2)} lds")
            n += 4

    ea_part(0, nsplit, "K_WX2")
    stamp(a, opt, 2)
    a("s_waitcnt vmcnt(0)")
    lds_add(a, 48, 30)
    lds_add(a, 12, 30)
    stamp(a, opt, 3)
    a("s_branch K_W1")

    a.lines.append("@@S3")
    a.label("K_S3")
    a(f"""s_cmp_lg_u32 s2, 0
    s_cbranch_scc1 K_NONONCE
    s_memrealtime s[44:45]
    s_waitcnt lgkmcnt(0)
    s_or_b32 s44, s44, 1
    v_mov_b32 v8, s44
    s_mov_b64 exec, 1
    global_store_dword v9, v8, s[{PDBG}:{PDBG+1}] sc1
    s_mov_b64 exec, -1""")
    a.label("K_NONONCE")
    a("s_barrier\ns_branch K_S3B")
    a.lines.append("@@S3B")
    a.label("K_S3B")
    a(f"""    v_bfe_u32 v24, v2, 1, 4
    v_and_b32 v21, 1, v2
    v_lshlrev_b32 v21, 2, v21
    v_and_b32 v26, 1, v24
    v_lshlrev_b32 v26, 4, v26
    v_mov_b32 v27, 0x3f80
    v_lshlrev_b32 v27, v26, v27
    v_lshrrev_b32 v24, 1, v24
    v_sub_u32 v24, v24, v21
    v_lshlrev_b32 v192, 4, v2
    v_mov_b32 v196, 0
    v_mov_b32 v197, 0
    v_mov_b32 v198, 0
    v_mov_b32 v199, 0""")
    for k in range(4):
        a(f"v_cmp_eq_u32 vcc, {k}, v24\ns_nop 1\nv_cndmask_b32 v{200+k}, 0, v27, vcc")
    a(f"s_mov_b32 s39, {SPIN}")
    a.label("K_N3")
    a(f"""global_load_dword v120, v9, s[{PDBG}:{PDBG+1}] sc1
    s_waitcnt vmcnt(0)
    v_readfirstlane_b32 s61, v120
    s_cmp_lg_u32 s61, 0
    s_cbranch_scc1 K_N3OK
    s_sleep 2
    s_sub_u32 s39, s39, 1
    s_cmp_lg_u32 s39, 0
    s_cbranch_scc1 K_N3""")
    a.label("K_N3OK")
    a(f"v_mov_b32 v30, {CNT}\nds_write_b32 v30, v120 offset:20")
    if nsplit < 50:
        a("s_cmp_ge_u32 s2, 250\ns_cbranch_scc1 K_NOEA3")
        ea_part(nsplit, 50, "K_WX3")
        a("s_waitcnt vmcnt(0)")
        a.label("K_NOEA3")
    lds_add(a, 12, 30)
    if not opt.get("p0", 1):
        lds_wait(a, 0, 2, "K_WA3", 30)
        stamp(a, opt, 4)
        poll(a, opt, FLG1, "K_P1", 30)
        a(f"v_mov_b32 v30, {CNT}\nv_mov_b32 v31, 1\nds_write_b32 v30, v31 offset:4\ns_branch K_GO1")
    a.label("K_W1")
    a("s_setprio 0")
    lds_wait(a, 4, 1, "K_W1L", 30)
    a.label("K_GO1")
    if opt.get("lp"):
        a(f"s_setprio {opt['lp']}")
    stamp(a, opt, 5)
    a(f"""v_lshlrev_b32 v6, 10, v{VTID}
    s_lshl_b32 s34, s32, 2
    s_add_u32 s34, s34, {OFF}
    s_add_u32 s35, s34, {256*1024}
    v_mov_b32 v8, 0
    s_movk_i32 s37, 244
    v_cmp_gt_u32 vcc, s37, v{VTID}
    buffer_load_dword v7, v6, s[20:23], s34 offen sc1
    s_mov_b64 exec, vcc
    buffer_load_dword v8, v6, s[20:23], s35 offen sc1
    s_mov_b64 exec, -1
    s_mov_b32 s37, 0xffff
    s_waitcnt vmcnt(0)
    v_lshlrev_b32 v{VCUR}, 16, v8
    v_bfi_b32 v{VCUR}, s37, v7, v{VCUR}
    v_lshrrev_b32 v{VEND}, 16, v7
    v_bfi_b32 v{VEND}, s37, v{VEND}, v8""")
    R, RK, BN = 0, 32, 64
    VREM, VFOUR, VCB, VADR, T8, T9 = 96, 98, 99, 101, 103, 104
    t = lambda n: 190 + n
    a.label("K2_ROUND")
    a("s_cmp_ge_u32 s33, 4\ns_cbranch_scc1 K2_JOIN")
    a(f"""v_subrev_u32 v{T8}, s40, v{VTID}
    v_cmp_gt_u32 vcc, s41, v{T8}
    v_sub_u32_sdwa v{VREM}, v{VEND}, v{VCUR} {SDW} src0_sel:WORD_0 src1_sel:WORD_0
    v_sub_u32_sdwa v{VREM+1}, v{VEND}, v{VCUR} {SDW} src0_sel:WORD_1 src1_sel:WORD_1
    v_mul_u32_u24 v{T9}, 3200, v{VTID}
    v_cndmask_b32 v{VREM}, 0, v{VREM}, vcc
    v_cndmask_b32 v{VREM+1}, 0, v{VREM+1}, vcc
    v_add_u32_sdwa v{VADR}, v{T9}, v{VCUR} {SDW} src0_sel:DWORD src1_sel:WORD_0
    v_add_u32_sdwa v{VADR+1}, v{T9}, v{VCUR} {SDW} src0_sel:DWORD src1_sel:WORD_1
    s_mov_b32 s37, {REC}
    s_mov_b32 s38, {REC+256*3200}""")
    for m in range(4):
        for u in range(2):
            a(f"""v_cmp_lt_u32 vcc, {16*m}, v{VREM+u}
            s_and_saveexec_b64 s[34:35], vcc
            s_cbranch_execz K2_RL{m}{u}
            buffer_load_dwordx4 {q4(R+16*u+4*m)}, v{VADR+u}, s[20:23], s{37+u} offen offset:{16*m} sc1""")
            a.label(f"K2_RL{m}{u}")
            a("s_mov_b64 exec, s[34:35]")
    a("s_cmp_eq_u32 s58, 0\ns_cbranch_scc1 K2_TOK\ns_cmp_lg_u32 s33, 3\ns_cbranch_scc1 K2_TW")
    lds_wait(a, 28, 4, "K_WD3", T8)
    a(f"ds_write_b128 v{t(2)}, {q4(t(6))} offset:{HIST}\nds_write_b128 v{t(2)}, {q4(t(10))} offset:{TG}")
    a(f"s_mov_b64 exec, 0xffff\nds_write_b128 v{t(2)}, {q4(t(6))} offset:{FLAG}\ns_mov_b64 exec, -1")
    lds_add(a, 44, T8)
    a.label("K2_TW")
    lds_wait(a, 44, 1, "K_WT", T8)
    a.label("K2_TOK")
    a(f"""v_mov_b32 v{VFOUR}, 4
    v_mul_u32_u24 v{VCB}, 25600, v{VTID}
    s_movk_i32 s39, 2
    v_add_u32 v{VCB+1}, {256*25600}, v{VCB}
    s_waitcnt vmcnt(0)""")
    stamp(a, opt, 6)
    if opt.get("gh"):
        lds_add(a, 60, T8)
    if opt.get("pre", 0):
        a(f"""s_cmp_eq_u32 s58, 0
        s_cbranch_scc1 K2_NOPRE
        v_and_b32 v{T8}, 63, v{VTID}
        v_lshlrev_b32 v{T8}, 4, v{T8}
        s_lshl_b32 s37, s33, 10
        s_add_u32 s37, s37, {CF}
        buffer_load_dwordx4 {q4(GA)}, v{T8}, s[20:23], s37 offen sc1
        s_lshl_b32 s37, s33, 14""")
        for g4 in range(4):
            a(f"s_add_u32 s38, s37, {WF+g4*4096}")
            for k in range(4):
                a(f"buffer_load_dwordx4 {q4(ACC+16*g4+4*k)}, v{T8}, s[20:23], s38 offen offset:{k*1024} sc1")
        a.label("K2_NOPRE")
    for u in range(2):
        for j in range(16):
            k = 16 * u + j
            a(f"""v_cmpx_lt_u32 vcc, {4*j}, v{VREM+u}
            v_lshlrev_b32_sdwa v{BN+k}, s39, v{R+k} {SDW} src0_sel:DWORD src1_sel:BYTE_3""")
            if j >= 4:
                a(f"s_cbranch_execz K2_CDONE{u}")
            a(f"ds_add_rtn_u32 v{RK+k}, v{BN+k}, v{VFOUR} offset:{HIST}")
        a(f"""v_cmp_lt_u32 vcc, 64, v{VREM+u}
        s_and_b64 exec, exec, vcc
        s_cbranch_scc0 K2_CDONE{u}
        v_mov_b32 v{T8}, 0
        ds_write_b32 v{T8}, v{VFOUR} offset:{FLAG}""")
        a.label(f"K2_CDONE{u}")
        a("s_mov_b64 exec, -1")
    a(f"""v_mov_b32 v{T8}, {CNT}
    v_mov_b32 v{T9}, 1
    v_and_b32 v{t(2)}, 63, v{VTID}
    v_lshrrev_b32 v{t(5)}, 3, v{t(2)}
    v_lshlrev_b32 v{t(4)}, 4, v{t(2)}
    v_mul_u32_u24 v{t(14)}, {GSTR}, v{t(5)}
    v_and_b32 v{t(5)}, 7, v{t(2)}
    v_add_u32 v{t(10)}, -1, v{t(5)}
    v_add_u32 v{t(11)}, -2, v{t(5)}
    v_add_u32 v{t(12)}, -4, v{t(5)}
    v_ashrrev_i32 v{t(10)}, 31, v{t(10)}
    v_ashrrev_i32 v{t(11)}, 31, v{t(11)}
    v_ashrrev_i32 v{t(12)}, 31, v{t(12)}
    s_waitcnt lgkmcnt(0)
    s_mov_b64 exec, 1
    ds_add_u32 v{T8}, v{T9} offset:8
    s_mov_b64 exec, -1""")
    lds_wait(a, 8, "s62", "K2_SS", T8)
    a(f"""s_add_u32 s62, s62, 4
    ds_read_b128 {q4(t(6))}, v{t(4)} offset:{HIST}
    v_max_u32 v{T8}, v{VREM}, v{VREM+1}
    s_waitcnt lgkmcnt(0)
    v_add_u32 v{t(7)}, v{t(7)}, v{t(6)}
    v_add_u32 v{t(8)}, v{t(8)}, v{t(7)}
    v_add_u32 v{t(9)}, v{t(9)}, v{t(8)}
    v_mov_b32 v{t(22)}, v{t(9)}
    s_nop 1""")
    for n, k in enumerate((1, 2, 4)):
        a(f"""v_mov_b32_dpp v{t(13)}, v{t(22)} row_shr:{k} row_mask:0xf bank_mask:0xf
        v_bfi_b32 v{t(13)}, v{t(10+n)}, 0, v{t(13)}
        v_add_u32 v{t(22)}, v{t(22)}, v{t(13)}
        s_nop 1""")
    a(f"""v_sub_u32 v{t(14)}, v{t(14)}, v{t(9)}
    s_movk_i32 s37, {CAP4}
    v_add_u32 v{t(14)}, v{t(14)}, v{t(22)}
    v_cmp_lt_u32 vcc, s37, v{t(22)}
    v_add_u32 v{t(15)}, v{t(14)}, v{t(6)}
    v_add_u32 v{t(16)}, v{t(14)}, v{t(7)}
    v_add_u32 v{t(17)}, v{t(14)}, v{t(8)}
    ds_write_b128 v{t(4)}, {q4(t(14))} offset:{BASE}
    v_lshrrev_b32 v{t(5)}, 1, v{t(2)}
    v_and_b32 v{t(5)}, 28, v{t(5)}
    s_mov_b32 exec_lo, 0x80808080
    s_mov_b32 exec_hi, 0x80808080
    ds_write_b32 v{t(5)}, v{t(22)} offset:{FLAG+32}
    s_mov_b64 exec, -1
    s_cbranch_vccnz K2_JOIN
    v_cmp_lt_u32 vcc, 40, v{T8}
    s_waitcnt lgkmcnt(0)""")
    for u in range(2):
        for j in range(10):
            a(f"ds_read_b32 v{BN+16*u+j}, v{BN+16*u+j} offset:{BASE}")
    a("s_cbranch_vccz K2_BDONE")
    for u in range(2):
        for j in range(10, 16):
            a(f"ds_read_b32 v{BN+16*u+j}, v{BN+16*u+j} offset:{BASE}")
    a.label("K2_BDONE")
    a("s_waitcnt lgkmcnt(0)")
    for u in range(2):
        for j in range(16):
            k = 16 * u + j
            a(f"""v_cmpx_lt_u32 vcc, {4*j}, v{VREM+u}
            v_add_u32 v{BN+k}, v{BN+k}, v{RK+k}""")
            if j >= 4:
                a(f"s_cbranch_execz K2_SDONE{u}")
            a(f"""v_and_b32 v{T9}, 0x3ff, v{R+k}
            v_lshrrev_b32 v{T8}, 5, v{R+k}
            v_lshl_add_u32 v{T9}, v{T9}, 5, v{VCB+u}
            ds_write2st64_b32 v{BN+k}, v{T8}, v{T9} offset0:{LSD//256} offset1:{LEA//256}""")
        a.label(f"K2_SDONE{u}")
        a("s_mov_b64 exec, -1")
    a(f"""v_min_u32 v{T8}, 64, v{VREM}
    v_min_u32 v{T9}, 64, v{VREM+1}
    v_lshl_add_u32 v{T8}, v{T9}, 16, v{T8}
    v_add_u32 v{VCUR}, v{VCUR}, v{T8}
    s_branch K2_JOIN""")

    a.label("K_PREP")
    a(f"""s_setprio 3
    s_sub_u32 s34, s2, 250
    s_mul_i32 s34, s34, 3
    s_add_u32 s34, s34, s33
    v_lshrrev_b32 v3, 4, v2
    v_and_b32 v4, 15, v2
    v_lshlrev_b32 v5, 11, v3
    v_lshl_add_u32 v5, v4, 3, v5
    v_lshlrev_b32 v6, 4, v2
    v_lshlrev_b32 v7, 10, v3
    v_lshl_add_u32 v7, v4, 3, v7
    v_lshlrev_b32 v8, 5, v4
    v_lshl_add_u32 v8, v3, 3, v8""")
    srd(a, 24, PGW, PGW + 1, 272 * 256)
    srd(a, 4, PU, PU + 1, 32768)

    def wf_loads(k):
        a(f"""s_add_u32 s35, s34, {18*k}
        s_lshl_b32 s{44+k}, s35, 10
        s_add_u32 s{44+k}, s{44+k}, {WF}
        s_cmp_ge_u32 s35, 32
        s_cselect_b32 s8, s4, s24
        s_cselect_b32 s9, s5, s25
        s_and_b32 s37, s35, 3
        s_lshl_b32 s37, s37, 13
        s_bfe_u32 s38, s35, 0x10004
        s_lshl_b32 s38, s38, 7
        s_bfe_u32 s39, s35, 0x20002
        s_lshl_b32 s39, s39, 1
        s_add_u32 s37, s37, s38
        s_add_u32 s37, s37, s39""")
        for j in range(8):
            a(f"buffer_load_ushort v{16+8*k+j}, v5, s[8:11], s37 offen offset:{j*256}")

    def wf_store(k):
        for j in range(4):
            a(f"v_lshl_or_b32 v{48+4*k+j}, v{17+8*k+2*j}, 16, v{16+8*k+2*j}")
        a(f"buffer_store_dwordx4 {q4(48+4*k)}, v6, s[20:23], s{44+k} offen sc1")

    a("s_mov_b32 s10, 32768\ns_mov_b32 s11, 0x20000")
    for k in range(3):
        wf_loads(k)
    a("s_barrier\ns_cmp_ge_u32 s34, 10\ns_cbranch_scc1 K_PC")
    wf_loads(3)
    a("s_waitcnt vmcnt(0)")
    wf_store(3)
    a("s_branch K_PW")
    a.label("K_PC")
    a(f"""s_sub_u32 s35, s34, 10
    s_lshr_b32 s38, s35, 2
    s_lshl_b32 s38, s38, 7
    s_and_b32 s39, s35, 3
    s_lshl_b32 s39, s39, 1
    s_add_u32 s37, s38, s39
    s_add_u32 s37, s37, 65536
    s_lshl_b32 s38, s35, 9
    s_add_u32 s38, s38, {CF}
    s_mov_b32 s39, {NEG_LOG2E}""")
    for j in range(4):
        a(f"buffer_load_ushort v{40+j}, v7, s[24:27], s37 offen offset:{j*256}")
    a("s_waitcnt vmcnt(0)")
    for j in range(4):
        a(f"v_lshlrev_b32 v{40+j}, 16, v{40+j}")
    for j in range(4):
        a(f"v_mul_f32 v{40+j}, s39, v{40+j}")
    a("v_cvt_pk_bf16_f32 v60, v40, v41\nv_cvt_pk_bf16_f32 v61, v42, v43")
    a("buffer_store_dwordx2 v[60:61], v8, s[20:23], s38 offen sc1")
    a.label("K_PW")
    for k in range(3):
        wf_store(k)
    a.label("K_PEND")
    lds_add(a, 12, 30)
    a("s_mov_b32 s39, 2\ns_branch K_PUB")

    a.lines.append("@@G")
    a.label("K_G")

    if opt.get("gp"):
        a(f"s_setprio {opt['gp']}")
    a(f"""s_and_b32 s34, s33, 3
    s_lshl_b32 s37, s34, 2
    v_add_u32 v8, s37, v4
    v_xor_b32 v10, v8, v2
    v_and_b32 v10, 15, v10
    v_lshlrev_b32 v10, 4, v10
    v_lshl_add_u32 v10, v8, 8, v10
    v_lshlrev_b32 v11, 2, v4
    v_xor_b32 v11, v11, v2
    v_and_b32 v11, 15, v11
    v_lshlrev_b32 v11, 4, v11
    v_lshl_add_u32 v11, v4, 8, v11
    v_and_b32 v12, 255, v0
    v_lshlrev_b32 v12, 4, v12
    s_mul_i32 s39, s2, 51200
    s_waitcnt lgkmcnt(0)""")
    srd(a, 24, PX, PX + 1, 26624, add="s36")
    a("s_sub_u32 s38, 6400000, s36\ns_min_u32 s26, s26, s38")
    srd(a, 4, PGW, PGW + 1, 32768, add=32768)
    srd(a, 8, PV, PV + 1, 32768)
    srd(a, 20, PWS, PWS + 1, WS_USED)
    a(f"""s_lshl_b32 s35, s34, 10
    s_add_u32 s38, s35, {XL}
    s_lshl_b32 s37, s34, 13""")
    if not opt.get("zl"):
        a("s_barrier")
    for st in range(7):
        if st < 6:
            a(f"s_add_u32 m0, s38, {st*4096}")
        else:
            a(f"s_add_u32 s38, s38, {6*4096}\ns_cmp_lt_u32 s34, 2\ns_cselect_b32 m0, s38, {JUNK}")
        a("v_add_u32 v10, 4096, v10" if st else "s_nop 0")
        a(f"buffer_load_dwordx4 v10, s[24:27], 0 offen{nt(4)} lds")
    if opt.get("zl"):
        a("s_barrier")
    lds_add(a, 40, 14)
    for sr, mat in ((4, 0), (8, 1)):
        if mat == 1 and opt.get("hw", 0):
            a("s_mov_b32 s45, s37\ns_cmp_ge_u32 s2, 250\ns_cbranch_scc1 K_NOHW")
            lds_wait(a, 56, 2, "K_HW", 14)
            a.label("K_NOHW")
            a("s_mov_b32 s37, s45")
        for hf in range(2):
            a(f"s_add_u32 m0, s37, {WL+mat*32768+hf*4096}\ns_add_u32 s44, s37, {hf*4096}")
            for k in range(4):
                a(f"buffer_load_dwordx4 v11, s[{sr}:{sr+3}], s44 offen offset:{k*1024} lds")
    a("s_branch K_G2")
    a.lines.append("@@G2")
    a.label("K_G2")
    lds_add(a, 32, 14)
    a(f"s_add_u32 s39, s39, {EAS}")
    srd(a, 16, PWS, PWS + 1, 51200, add="s39")
    a("s_cmp_lt_u32 s2, 250\ns_cselect_b32 s18, s18, 0\ns_lshl_b32 s39, s36, 1")
    srd(a, 12, PWS, PWS + 1, 50176, add="s39")
    a(f"s_sub_u32 s38, {TAB_SZ}, s39\ns_min_u32 s14, s14, s38")
    a(f"""v_bfe_u32 v18, v2, 2, 2
    v_bfe_u32 v19, v2, 4, 1
    v_bfe_u32 v20, v2, 1, 1
    v_lshl_add_u32 v19, v19, 1, v20
    s_lshl_b32 s37, s34, 2
    v_add_u32 v19, s37, v19
    v_lshlrev_b32 v20, 2, v18
    v_xor_b32 v19, v19, v20
    v_lshrrev_b32 v21, 5, v2
    v_lshl_add_u32 v20, v21, 3, v18
    v_lshlrev_b32 v20, 8, v20
    v_lshl_add_u32 v20, v19, 4, v20
    v_and_b32 v19, 1, v2
    v_lshl_add_u32 v8, v19, 3, v20
    v_and_b32 v18, 31, v2
    v_xor_b32 v22, v21, v18
    v_and_b32 v22, 15, v22
    v_lshlrev_b32 v22, 4, v22
    v_lshl_add_u32 v22, v18, 8, v22
    v_add_u32 v22, {XL}, v22
    v_lshrrev_b32 v11, 3, v2
    v_lshlrev_b32 v11, 9, v11
    v_and_b32 v19, 7, v2
    v_lshl_add_u32 v11, v19, 4, v11
    s_lshl_b32 s37, s34, 7
    v_add_u32 v11, s37, v11
    s_lshl_b32 s37, s34, 12
    s_add_u32 s37, s37, {SCR}
    v_lshl_add_u32 v10, v2, 4, s37
    v_lshlrev_b32 v9, 9, v21
    v_lshl_add_u32 v9, v18, 2, v9
    v_add_u32 v9, s37, v9
    s_mov_b32 s44, {NEG_LOG2E}
    s_mov_b32 s45, 0x7fff0000
    s_mov_b32 s46, 0xffff""")
    for s in range(8):
        a(f"v_xor_b32 v{24+s}, {s*32}, v22")
    def copy_out(lo=0, hi=13, word=12, target=4, tag="K_WE"):
        a(f"""v_and_b32 v13, 255, v{VTID}
        v_lshlrev_b32 v12, 4, v13
        v_lshrrev_b32 v14, 5, v12
        v_lshlrev_b32 v14, 2, v14
        v_add_u32 v14, {SM+INV}, v14
        v_and_b32 v15, 16, v12""")
        lds_wait(a, word, target, tag, 16)
        stamp(a, opt, 5)
        for n in range(lo, hi):
            a(f"ds_read_b32 v{32+n}, v14 offset:{512*n}")
        a("s_waitcnt lgkmcnt(0)")
        for n in range(lo, hi):
            a(f"v_add_u32 v{32+n}, v{32+n}, v15\nds_read_b128 {q4(64+4*n)}, v{32+n}")
        for n in range(lo, hi):
            a(f"v_add_u32 v13, {4096*n}, v12\ns_waitcnt lgkmcnt({hi-1-n})")
            a(f"buffer_store_dwordx4 {q4(64+4*n)}, v13, s[16:19], 0 offen sc1")
        stamp(a, opt, 6)

    def copy_small(lo, hi, tag):
        a(f"""v_and_b32 v13, 255, v{VTID}
        v_lshlrev_b32 v12, 4, v13
        v_lshrrev_b32 v18, 5, v12
        v_lshlrev_b32 v18, 2, v18
        v_add_u32 v18, {SM+INV}, v18
        v_and_b32 v19, 16, v12""")
        lds_wait(a, 12, 4, tag, 16)
        for n in range(lo, hi):
            a(f"ds_read_b32 v{20+n-lo}, v18 offset:{512*n}")
        a("s_waitcnt lgkmcnt(0)")
        for n in range(lo, hi):
            a(f"v_add_u32 v{20+n-lo}, v{20+n-lo}, v19\nds_read_b128 {q4(224+4*(n-lo))}, v{20+n-lo}")
        for n in range(lo, hi):
            a(f"v_add_u32 v13, {4096*n}, v12\ns_waitcnt lgkmcnt({hi-1-n})")
            a(f"buffer_store_dwordx4 {q4(224+4*(n-lo))}, v13, s[16:19], 0 offen sc1")

    eap = opt.get("eap", 6)
    if eap:
        a("s_cmp_ge_u32 s2, 250\ns_cbranch_scc1 K_NOEP")
        copy_out(0, eap, 48, 2, "K_WE0")
        a(f"s_waitcnt vmcnt({eap})\ns_branch K_EPD")
        a.label("K_NOEP")
    a("s_waitcnt vmcnt(0)")
    a.label("K_EPD")
    stamp(a, opt, 1)
    lds_add(a, 24, 14)
    lds_wait(a, 24, 4, "K_WX", 14)
    stamp(a, opt, 2)
    AB = (32, 192)
    AC = (128, 160)

    def a_reads(T):
        return [f"ds_read_b128 {q4(AB[T&1]+4*s)}, v{24+s} offset:{T*8192}" for s in range(8)]

    def mfmas(T):
        L = []
        for s in range(8):
            for mat in range(2):
                d = AC[T & 1] + 16 * mat
                L.append(f"v_mfma_f32_32x32x16_bf16 v[{d}:{d+15}], {q4(AB[T&1]+4*s)}, {q4(64+32*mat+4*s)}, {'0' if s == 0 else f'v[{d}:{d+15}]'}")
        return L

    def pack(T, ng=4):
        L = []
        for g in range(ng):
            for r in range(4):
                x, h, tt = AC[T & 1] + 4 * g + r, AC[T & 1] + 16 + 4 * g + r, 14 + (r & 1)
                L += [f"v_mul_f32 v{x}, s44, v{x}", f"v_and_b32 v{tt}, 0x7fffffff, v{h}", f"v_cvt_f16_f32 v{x}, v{x}",
                      f"v_add_u32 v{tt}, 0x8000, v{tt}", f"v_and_b32 v{x}, 0xffff, v{x}",
                      f"v_sub_u32_e64 v{tt}, v{tt}, v{x} clamp", f"v_bfi_b32 v{tt}, s45, v{tt}, v{h}",
                      f"v_bfi_b32 v{x}, s46, v{x}, v{tt}", f"ds_write_b32 v9, v{x} offset:{g*1024+r*128}"]
        return L

    def yield_to_lists(tag):
        if not opt.get("gh"):
            return
        a(f"""v_mov_b32 v16, {CNT}
        ds_read_b32 v17, v16 offset:4
        s_waitcnt lgkmcnt(0)
        v_readfirstlane_b32 s37, v17
        s_cmp_eq_u32 s37, 0
        s_cbranch_scc1 {tag}_N""")
        lds_wait(a, 60, 4, tag, 16)
        a.label(tag + "_N")

    def flush(T, nk=4):
        for k in range(nk):
            a(f"ds_read_b128 {q4(224+4*k)}, v10 offset:{k*1024}")
        for k in range(nk):
            a(f"v_add_u32 v16, {T*16384+k*4096}, v11\ns_waitcnt vmcnt({opt.get('ths', 63)}) lgkmcnt({nk-1-k})")
            a(f"buffer_store_dwordx4 {q4(224+4*k)}, v16, s[12:15], 0 offen sc1")

    for x in a_reads(0):
        a(x)
    m0 = mfmas(0)
    for s in range(8):
        for mat in range(2):
            for jj in range(2):
                r = 64 + mat * 32 + s * 4 + jj * 2
                a(f"ds_read_b64_tr_b16 v[{r}:{r+1}], v8 offset:{mat*32768+s*4096+jj*1024}")
        if s >= 1:
            a("s_waitcnt lgkmcnt(4)")
            a(m0[2 * s - 2] + "\n" + m0[2 * s - 1])
    a("s_waitcnt lgkmcnt(0)")
    lds_add(a, 28, 14)
    for x in a_reads(1):
        a(x)
    a(m0[14] + "\n" + m0[15])
    lds_wait(a, 28, 4, "K_WD", 16)
    stamp(a, opt, 3)
    for T in range(3):
        a("s_waitcnt lgkmcnt(0)")
        mm = mfmas(T + 1)
        pk_ = pack(T)
        a(mm[0] + "\n" + mm[1])
        if T == 0:
            a("s_nop 7")
        i = 0
        for m in mm[2:]:
            for x in pk_[i:i + 10]:
                a(x)
            i += 10
            a(m)
        for x in pk_[i:]:
            a(x)
        if T < 2:
            for x in a_reads(T + 2):
                a(x)
            a("s_nop 0")
        if T == 0 and opt.get("gw", 0) and not opt.get("eaf", 0):
            lds_wait(a, 36 if opt.get("gw", 0) == 1 else 0, opt.get("gw", 0), "K_WS1", 16)
        if T >= 1:
            yield_to_lists(f"K_Y{T}")
        flush(T)
        em = opt.get("em", 0)
        if em == 1 and T < 2:
            copy_small(*((6, 10), (10, 13))[T], f"K_WM{T}")
        if em == 2 and T >= 1:
            copy_small(*((6, 10), (10, 13))[T - 1], f"K_WM{T}")
    a("s_nop 3")
    for x in pack(3, 1):
        a(x)
    flush(3, 1)
    stamp(a, opt, 4)
    if opt.get("gh") == 2:
        lds_wait(a, 60, 4, "K_Y9", 16)
    else:
        yield_to_lists("K_Y9")
    if not opt.get("em", 0):
        copy_out(eap, 13)
    a(f"v_mov_b32 v16, {CNT}\ns_mov_b32 s38, {SPIN}")
    a.label("K_GN")
    a(f"""ds_read_b32 v17, v16 offset:20
    s_waitcnt vmcnt(0) lgkmcnt(0)
    v_readfirstlane_b32 s61, v17
    s_cmp_lg_u32 s61, 0
    s_cbranch_scc1 K_GNOK
    s_sleep 1
    s_sub_u32 s38, s38, 1
    s_cmp_lg_u32 s38, 0
    s_cbranch_scc1 K_GN""")
    a.label("K_GNOK")
    lds_arrive(a, 16, 3, 16)
    a("s_cbranch_scc0 K_NOS2")
    signal(a, FLG2, 16)
    a.label("K_NOS2")
    if opt.get("hoist", 0):
        lds_wait(a, 4, 1, "K_WGO", 16)
    if opt.get("ct2", 0):
        a(f"v_and_b32 v241, 255, v{VTID}\ns_cmp_ge_u32 s33, {4+opt.get('ct2', 0)}\ns_cbranch_scc1 K2_JOIN")
        code_touch(a, "K_CT1", "K2_JOIN", 1, 38, 241, 242, 243)

    a.label("K2_JOIN")
    stamp(a, opt, 7)

    def frag_loads():
        a(f"""v_lshlrev_b32 v126, 4, v{t(2)}
        s_and_b32 s37, s33, 3
        s_lshl_b32 s37, s37, 10
        s_add_u32 s38, s37, {CFL}
        v_add_u32 v124, s38, v126
        s_add_u32 s37, s37, {CF}
        buffer_load_dwordx4 {q4(BOP)}, v126, s[20:23], s37 offen sc1
        s_lshl_b32 s37, s33, 12
        s_add_u32 s38, s37, {WFL}
        v_add_u32 v125, s38, v126""")
        for mat in range(2):
            a(f"s_add_u32 s38, s37, {WF+mat*32768}")
            for k in range(4):
                a(f"buffer_load_dwordx4 {q4(ACC+16*mat+4*k)}, v126, s[20:23], s38 offen offset:{k*1024} sc1")

    a(f"v_and_b32 v{t(2)}, 63, v{VTID}")
    if opt.get("hoist", 0):
        a("s_cmp_eq_u32 s58, 0\ns_cbranch_scc1 K2_NOH")
        frag_loads()
        a.label("K2_NOH")
    a("s_waitcnt lgkmcnt(0)\ns_barrier")
    stamp(a, opt, 8)
    a("s_cmp_eq_u32 s58, 0\ns_cbranch_scc1 K2_NOB")
    if not opt.get("hoist", 0):
        frag_loads()
    a(f"""v_and_b32 v{t(3)}, 15, v{t(2)}
    v_lshrrev_b32 v{t(4)}, 4, v{t(2)}
    v_lshlrev_b32 v{VLANE}, 4, v{t(3)}
    s_mov_b32 s50, 0
    s_mov_b32 s51, -1
    v_lshlrev_b32 v{VGC}, 4, v{t(4)}
    v_mov_b32 v{VGM}, -1
    s_mov_b64 exec, s[50:51]
    v_add_u32 v{VGC}, {TG-32}, v{VGC}
    v_mov_b32 v{VGM}, 0x1e0
    s_mov_b64 exec, -1
    v_and_b32 v{t(3)}, 3, v{t(2)}
    v_lshlrev_b32 v{t(3)}, 3, v{t(3)}
    v_add_u32 v{VSC}, {TS}, v{t(3)}
    s_movk_i32 s54, 0x1e0
    s_mov_b32 s55, 0xfffe00""")
    srd(a, 12, PWS, PWS + 1, TAB_SZ)
    srd(a, 16, PWS, PWS + 1, TAB_SZ, add=EAS)
    srd(a, 28, PO, PO + 1, 25088, add="s36")
    a("s_sub_u32 s37, 6400000, s36\ns_min_u32 s30, s30, s37")
    a.label("K2_NOB")
    a(f"""v_mov_b32 v{t(3)}, 0
    v_and_b32 v{t(5)}, 7, v{t(2)}
    v_lshlrev_b32 v{t(4)}, 2, v{t(5)}
    ds_read_b32 v{t(22)}, v{t(4)} offset:{FLAG+32}
    ds_read_b32 v{t(23)}, v{t(3)} offset:{FLAG}
    s_waitcnt lgkmcnt(0)
    v_readfirstlane_b32 s48, v{t(23)}
    s_cmp_eq_u32 s58, 0
    s_cbranch_scc1 K2_NOP2
    s_mov_b32 s58, 0
""")
    if not opt.get("pre", 0):
        a(f"s_waitcnt vmcnt(8)\nds_write_b128 v124, {q4(BOP)}")
        for mat in range(2):
            for k in range(4):
                a(f"s_waitcnt vmcnt({7-4*mat-k})\nds_write_b128 v125, {q4(ACC+16*mat+4*k)} offset:{mat*32768+k*1024}")
    a("s_cmp_lg_u32 s33, 0\ns_cbranch_scc1 K2_W2")
    poll(a, opt, FLG2, "K_P2", 0)
    a.label("K2_W2")
    a("s_mov_b32 s63, 1\ns_branch K2_CHK")
    a.label("K2_NOP2")
    a("s_mov_b32 s63, 0")
    a.label("K2_CHK")
    a(f"""s_movk_i32 s37, {CAP4}
    v_cmp_lt_u32 vcc, s37, v{t(22)}
    s_cbranch_vccz K2_FITS
    s_cmp_eq_u32 s41, 8
    s_cbranch_scc1 K2_FITS
    s_movk_i32 s41, 8
    s_waitcnt vmcnt(0)
    s_branch K2_AGAIN""")
    a.label("K2_FITS")
    if opt.get("pair", 1):
        a("s_cmp_eq_u32 s42, 0\ns_cbranch_scc1 K2_HAVEG")
        a(f"v_lshl_add_u32 v{t(24)}, v{t(22)}, 3, v{t(5)}\ns_nop 0\ns_sub_u32 s37, 11, s33")
        for k in range(1, 8):
            a(f"v_mov_b32_dpp v{t(25+k)}, v{t(24)} row_ror:{k} row_mask:0xf bank_mask:0xf")
        for k in range(1, 8):
            a(f"v_sub_u32 v{t(25+k)}, v{t(24)}, v{t(25+k)}")
        for k in range(1, 8):
            a(f"v_lshrrev_b32 v{t(25+k)}, 31, v{t(25+k)}")
        a(f"""v_add3_u32 v{t(25)}, v{t(26)}, v{t(27)}, v{t(28)}
        v_add3_u32 v{t(25)}, v{t(25)}, v{t(29)}, v{t(30)}
        v_add3_u32 v{t(25)}, v{t(25)}, v{t(31)}, v{t(32)}
        s_cmp_lt_u32 s33, 4
        s_cselect_b32 s37, {"s33, s37" if opt.get("pair", 1) == 1 else "s33, s37"}
        {"s_sub_u32 s37, 7, s37" if opt.get("pair", 1) == 2 else ""}
        v_cmp_eq_u32 vcc, s37, v{t(25)}
        s_nop 0
        s_ff1_i32_b64 s43, vcc
        s_mul_i32 s52, s43, 49
        s_add_u32 s52, s52, 2
        s_lshr_b32 s52, s52, 2""")
        a.label("K2_HAVEG")
    a(f"""v_readlane_b32 s44, v{t(22)}, s43
    s_mul_i32 s49, s43, {GSTR}
    v_mov_b32 v{t(7)}, 0x1e0
    v_lshrrev_b32 v{t(8)}, 4, v{t(2)}
    v_and_b32 v{t(9)}, 15, v{t(2)}
    s_add_u32 s45, s44, 127
    s_lshr_b32 s45, s45, 7
    s_max_u32 s59, s44, 4
    s_sub_u32 s59, s59, 4
    s_bfe_u32 s57, s59, 0x10006
    s_andn2_b32 s59, s59, 63
    s_add_u32 s37, s49, s59
    s_sub_u32 s59, s44, s59
    v_lshl_add_u32 v{t(6)}, v{t(2)}, 2, s37
    ds_read2st64_b32 v[{t(10)}:{t(11)}], v{t(6)} offset0:{LSD//256} offset1:{LEA//256}
    v_lshlrev_b32 v{t(12)}, 2, v{t(2)}
    v_cmp_gt_u32 vcc, s59, v{t(12)}
    v_and_b32 v{t(13)}, 12, v{t(12)}
    v_and_b32 v{t(14)}, 12, v{t(2)}
    v_lshl_add_u32 v{t(13)}, v{t(13)}, 2, v{t(14)}
    v_and_b32 v{t(14)}, 64, v{t(12)}
    v_add3_u32 v{t(6)}, v{t(13)}, v{t(14)}, s37
    s_add_u32 s59, s59, 15
    s_lshr_b32 s59, s59, 4
    s_add_u32 s37, s49, {LSD}
    v_lshl_add_u32 v{PSRC}, v{t(8)}, 4, s37
    v_and_b32 v{PD}, 0xfc, v{t(2)}
    v_add_u32 v{PD}, s37, v{PD}
    s_add_u32 s37, s49, {LEA}
    v_lshl_add_u32 v{PG}, v{t(9)}, 2, s37
    s_mov_b64 exec, s[50:51]
    v_subrev_u32 v{PG}, {LEA-LSD}, v{PG}
    s_mov_b64 exec, -1
    s_sub_u32 s60, s45, 1
    s_and_b32 s37, s33, 3
    s_lshl_b32 s37, s37, 2
    s_bitcmp1_b32 s33, 2
    s_cselect_b32 s38, 32, 0
    s_add_u32 s37, s37, {PROG}
    s_add_u32 s37, s37, s38
    v_mov_b32 v{VT0}, s37
    s_waitcnt lgkmcnt(0)
    v_cndmask_b32 v{t(10)}, v{t(7)}, v{t(10)}, vcc
    v_cndmask_b32 v{t(11)}, v{t(3)}, v{t(11)}, vcc
    s_mov_b32 exec_hi, 0
    ds_write2st64_b32 v{t(6)}, v{t(10)}, v{t(11)} offset0:{LSD//256} offset1:{LEA//256}
    s_mov_b32 exec_hi, -1""")
    idx_reads(a, 0, 0)
    idx_reads(a, 1, 1)
    a("s_cmp_lt_u32 0, s45")
    enable_srds(a, opt)
    a("s_cmp_eq_u32 s63, 0\ns_cbranch_scc1 K2_NOW\ns_waitcnt lgkmcnt(0)\ns_barrier")
    a.label("K2_NOW")
    stamp(a, opt, 9)
    a("s_setprio 3\ns_waitcnt lgkmcnt(3)")
    for part in issue_parts(0):
        for x in part:
            a(x)
    a("s_cmp_eq_u32 s42, 0\ns_cbranch_scc1 K2_NOINIT")
    XA = 64
    a(f"""v_and_b32 v114, 63, v{VTID}
    v_and_b32 v118, 15, v114
    v_lshrrev_b32 v119, 4, v114
    v_add_u32 v100, s52, v118
    v_xor_b32 v101, v119, v100
    v_and_b32 v101, 15, v101
    v_lshlrev_b32 v101, 4, v101
    v_lshl_add_u32 v100, v100, 8, v101
    v_add_u32 v100, {XL}, v100
    v_lshlrev_b32 v114, 4, v114
    v_add_u32 v114, {WFL}, v114""")
    for s in range(4):
        if s:
            a(f"v_xor_b32 v101, {s*64}, v100")
        a(f"ds_read_b128 {q4(XA+4*s)}, v{101 if s else 100}")
    ring = [80, 84, 88, 92, 108, 120, 124, GA + 8, GA + 12] + [BOP + 4 * k for k in range(3)]
    DEPTH = 10
    side = ["s_lshl_b32 s37, s33, 12", f"s_add_u32 s37, s37, {XAL}",
            "v_lshl_add_u32 v115, v118, 5, s37", "v_lshl_add_u32 v115, v119, 3, v115",
            f"s_sub_u32 s37, s37, {32+CFL}", "v_lshlrev_b32 v117, 5, v118", "v_lshl_add_u32 v117, v119, 4, v117",
            f"v_add_u32 v117, {CFL}, v117",
            "s_mov_b64 exec, s[50:51]\nv_add_u32 v117, s37, v117\ns_mov_b64 exec, -1\ns_nop 1",
            f"s_mov_b32 s38, {NEG_LOG2E}"]
    lds_ops = []
    for f in range(64 + DEPTH):
        if f >= DEPTH:
            ff = f - DEPTH
            mat, b, s = ff >> 5, (ff >> 2) & 7, ff & 3
            d = (ACC if mat else P) + 4 * b
            younger = len(lds_ops) - 1 - lds_ops.index(("r", ff))
            a(f"s_waitcnt lgkmcnt({min(younger, 15)})")
            a(mf16(d, XA + 4 * s, ring[ff % len(ring)], "0" if s == 0 else q4(d)))
            if ff < len(side):
                a(side[ff])
            if 36 <= ff < 60:
                pb, k = (ff - 36) // 3, (ff - 36) % 3
                e = P + 4 * pb
                if k == 0:
                    a(f"v_mul_f32 v{e}, s38, v{e}\nv_mul_f32 v{e+1}, s38, v{e+1}")
                elif k == 1:
                    a(f"v_mul_f32 v{e+2}, s38, v{e+2}\nv_mul_f32 v{e+3}, s38, v{e+3}")
                else:
                    a(f"v_cvt_pk_bf16_f32 v{e}, v{e}, v{e+1}\nv_cvt_pk_bf16_f32 v{e+1}, v{e+2}, v{e+3}")
                    a(f"ds_write_b64 v115, v[{e}:{e+1}] offset:{pb*512}")
                    lds_ops.append(("w", pb))
        if f < 64:
            a(f"ds_read_b128 {q4(ring[f % len(ring)])}, v114 offset:{f*1024}")
            lds_ops.append(("r", f))
    a("s_nop 3")
    for b in range(8):
        a(f"ds_read_b128 {q4(BOP+4*b)}, v117 offset:{b*512}")
    a.label("K2_NOINIT")
    a("s_setprio 1")
    stamp(a, opt, 10)
    a("s_mov_b32 s46, 0\ns_cmp_eq_u32 s45, 0\ns_cbranch_scc1 K2_TDONE")
    a("s_waitcnt vmcnt(16) lgkmcnt(0)")
    for tt in range(4):
        a(mf16(P + 4 * tt, GA, BOP + 4 * tt, "0"))
    for i in range(16):
        a(f"v_mov_b32 v{Z+i}, 0")
    a("s_cmp_eq_u32 s60, 0\ns_cbranch_scc1 K2_LAST0")
    a(".p2align 6")
    topt = dict(opt)
    topt["stamp"] = 0
    topt["prio"] = 2
    topt["nosel"] = 1
    a.label("K2_LOOP")
    tile(a, topt, 0, 0, filler=["s_cmp_eq_u32 s46, s60", "s_nop 0"])
    a("s_cbranch_scc1 K2_LAST1")
    tile(a, topt, 1, 1, filler=[f"v_add_u32 v{PG}, 256, v{PG}", f"v_add_u32 v{PD}, 256, v{PD}"])
    a(f"""v_add_u32 v{PSRC}, 256, v{PSRC}
    s_cmp_lg_u32 s46, s60
    s_cbranch_scc1 K2_LOOP""")
    for slot in range(2):
        a.label(f"K2_LAST{slot}")
        a(f"s_cmp_eq_u32 s57, 0\ns_cbranch_scc1 K2_HALF{slot}")
        last_tile(a, topt, slot, slot, 2)
        a("s_branch K2_TDONE")
        a.label(f"K2_HALF{slot}")
        last_tile(a, topt, slot, slot, 1)
        if slot == 0:
            a("s_branch K2_TDONE")
    a.label("K2_TDONE")
    if opt.get("lag"):
        a(f"v_mov_b32 v{VT1}, 0x7fff\nds_write2_b32 v{VT0}, v{VT1}, v{VT1} offset0:0 offset1:16")
    stamp(a, opt, 11)
    a("""s_waitcnt vmcnt(0) lgkmcnt(0)
    s_mov_b32 s42, 0
    s_cmp_lg_u32 s48, 0
    s_cbranch_scc1 K2_AGAIN
    s_add_u32 s40, s40, s41
    s_cmp_ge_u32 s40, 256
    s_cbranch_scc1 K2_EPI""")
    a.label("K2_AGAIN")
    a(f"""s_setprio 0
    s_waitcnt lgkmcnt(0)
    s_barrier
    v_and_b32 v2, 63, v{VTID}
    v_lshlrev_b32 v3, 4, v2
    v_mov_b32 v4, 0
    v_mov_b32 v5, 0
    v_mov_b32 v6, 0
    v_mov_b32 v7, 0
    ds_write_b128 v3, v[4:7] offset:{HIST}
    ds_write_b32 v4, v4 offset:{FLAG}
    s_waitcnt lgkmcnt(0)
    s_barrier
    s_branch K2_ROUND""")
    a.label("K2_EPI")
    a(f"""s_mul_i32 s53, s43, 49
    s_add_u32 s53, s53, 51
    s_lshr_b32 s53, s53, 2
    s_sub_u32 s53, s53, s52
    v_and_b32 v2, 63, v{VTID}
    v_lshrrev_b32 v3, 4, v2
    v_lshlrev_b32 v3, 2, v3
    v_and_b32 v4, 15, v2
    v_add_u32 v5, s52, v3
    v_lshlrev_b32 v5, 8, v5
    v_lshl_add_u32 v5, v4, 3, v5
    s_mov_b32 s36, {NEG_LOG2E}
    s_mov_b32 s37, {NEG_LOG2E}
    v_mov_b32 v6, 0x7ffffff0""")
    for r in range(4):
        a(f"""v_add_u32 v7, {r}, v3
        v_cmp_gt_u32 vcc, s53, v7
        s_nop 1
        v_cndmask_b32 v{8+r}, v6, v5, vcc""")
    for hh in range(2):
        lo = 16 * hh
        for i in range(lo, lo + 16, 2):
            a(f"v_pk_mul_f32 v[{16+i}:{17+i}], v[{ACC+i}:{ACC+i+1}], s[36:37]")
        for i in range(lo, lo + 16):
            a(f"v_exp_f32 v{16+i}, v{16+i}")
        for i in range(lo, lo + 16, 2):
            a(f"v_pk_add_f32 v[{16+i}:{17+i}], v[{16+i}:{17+i}], 1.0 op_sel_hi:[1,0]")
        for i in range(lo, lo + 16):
            a(f"v_rcp_f32 v{16+i}, v{16+i}")
        for i in range(lo, lo + 16, 2):
            a(f"v_pk_mul_f32 v[{16+i}:{17+i}], v[{16+i}:{17+i}], v[{ACC+i}:{ACC+i+1}]")
        for r in range(4):
            o = 48 + (r * 2 + hh) * 2
            y = lambda tt: 16 + (4 * hh + tt) * 4 + r
            a(f"v_cvt_pk_bf16_f32 v{o}, v{y(0)}, v{y(1)}\nv_cvt_pk_bf16_f32 v{o+1}, v{y(2)}, v{y(3)}")
            a(f"buffer_store_dwordx2 v[{o}:{o+1}], v{8+r}, s[28:31], 0 offen offset:{r*256+hh*128} sc1")
    stamp(a, opt, 12)
    if opt.get("stamp"):
        a("s_waitcnt lgkmcnt(0) vmcnt(0)")
        srd(a, 4, PWS, PWS + 1, 0x100000, add=STAMP)
        a("s_lshl_b32 s3, s2, 3\ns_add_u32 s3, s3, s33\ns_lshl_b32 s3, s3, 6\nv_mov_b32 v1, 0")
        for k, idx in enumerate(opt["stamps"]):
            a(f"v_mov_b32 v0, s{84+2*k}\nbuffer_store_dword v0, v1, s[4:7], s3 offen offset:{4*idx}")
        a(f"v_mov_b32 v0, s44\nbuffer_store_dword v0, v1, s[4:7], s3 offen offset:56\ns_waitcnt vmcnt(0)")
    a.label("K_END")
    a("s_endpgm")
    cut = lambda m: a.lines.index("@@" + m)
    L = a.lines
    b, s2, s2b, s3, s3b, g, g2 = (cut(m) for m in ("BODY", "S2", "S2B", "S3", "S3B", "G", "G2"))
    a.lines = (L[:b] + L[s3+1:s3b] + L[s2+1:s2b] + L[g+1:g2] + L[s2b+1:s3] + L[b+1:s2] + L[s3b+1:g] + L[g2+1:])
    notes = {'K_S2': "wave 2: touches this workgroup's share of the B / V lines", 'K_S2B': "wave 2: stages the first half of the two chunks' edge attributes in LDS", 'K_S01': 'waves 0, 1: one chunk each, 16 edges per lane; ranks by bucket and by (die range, source range)', 'K_S3B': 'wave 3: one-hot rows, token into LDS, second half of the attributes', 'K_G2': 'waves 4..7: node table through a per-wave LDS transpose, then the attribute reorder', 'K_S3': 'wave 3: workgroup 0 publishes the launch token through d_debug', 'K_PUB': "records (or weight fragments) have been issued; the last wave to see its stores land raises this workgroup's flag, wave 0 waits for the first hand-off", 'K_GO1': 'every chunk is sorted: segment bounds of chunks tid and tid+256 for this bucket', 'K2_ROUND': 'one round takes up to 16 records per segment; oversize buckets repeat it over windows of 8 threads', 'K_PREP': 'workgroups 250..255, waves 0..2: A, U and -log2e*C as MFMA B-operand fragments', 'K_G': 'waves 4..7: x rows and B / V into LDS', 'K2_JOIN': 'lists are complete; fragments into LDS, second hand-off, group choice, first tile, x@A and x@U', 'K2_LOOP': '32-edge tiles, two register slots; each tile issues the loads of the next one', 'K2_LAST0': 'final tile: its last 16 edges sit row-first, s59 register rows are live', 'K2_AGAIN': 'next round of an oversize bucket', 'K2_EPI': 'out = silu(x@U + aggregate)'}
    out = []
    for ln in a.lines:
        if ln.endswith(":") and ln[:-1] in notes:
            out.append("; " + notes[ln[:-1]])
        out.append(ln)
    a.lines = out
    a.lines = [ln + " sc1" if ln.startswith("buffer_load_dwordx4") and "lds" not in ln and ("s[12:15]" in ln or "s[16:19]" in ln)
               else ln for ln in a.lines]
    return a


HEADER = """; Edge-gated message passing layer in one launch, one workgroup per CU.
;     hand-off flags 0xFA0000 / 0xFA4000 (valid only when equal to this launch's token), attributes 0x1000000.
;              98-node bucket; after the first grid-wide hand-off, this bucket's records sorted by 12/13-node
;   waves 4-7: node table (x@V rounded into the high half | -log2e * x@B as f16 low half) and the edge
;   after the second hand-off, per 32-edge tile: gate = e@C + onehot@(x@A) by MFMA, sigmoid * hv on the VALU,
"""


def build(opt):
    k = gen_fused(opt)
    for pr in lint(k.lines):
        print(f"LINT: need {pr[2]} have {pr[3]}: {pr[4]}  ->  {pr[5]}", file=sys.stderr)
    nm = NAME + "_kernel"
    s = HEADER + f"; @launch grid=(256,1,1) block=(512,1,1) lds={LDS}\n"
    s += '.amdgcn_target "amdgcn-amd-amdhsa--gfx950"\n.text\n'
    s += f".globl {nm}\n.p2align 8\n.type {nm},@function\n" + k.text()
    s += "; keeps the code-touching load above inside this section\n.p2align 8\n.fill 256, 4, 0xbf810000\n"
    s += '.section .rodata,"a"\n' + kd(nm, 256, 102)
    return s


if __name__ == "__main__":
    opt = {}
    out = f"cdna_kernels/{NAME}.s"
    for arg in sys.argv[1:]:
        if arg.startswith("-o"):
            out = arg[2:]
        else:
            k, _, v = arg.partition("=")
            opt[k] = int(v) if v else 1
    if opt.get("stamp") == 1:
        opt["stamps"] = [0, 1, 2, 3, 4, 5, 6, 7, 8]
    elif opt.get("stamp") == 2:
        opt["stamps"] = [0, 7, 8, 9, 10, 11, 12]
    open(out, "w").write(build(opt))
    print("wrote", out)
```
